```python
import torch

def _softmax(x, axis=-1):
    return torch.softmax(x, dim=axis)
def _gelu(x):
    return torch.nn.functional.gelu(x, approximate="tanh")
def _silu(x):
    return torch.nn.functional.silu(x)
def _sigmoid(x):
    return torch.sigmoid(x)
def _layernorm(x, axis=-1, eps=1e-5):
    m = x.mean(dim=axis, keepdim=True)
    v = x.var(dim=axis, keepdim=True, unbiased=False)
    return (x - m) / torch.sqrt(v + eps)
def _scatter_add(tgt, idx, src, axis=0):
    return tgt.clone().index_add_(axis, idx, src)
def _segment_sum(src, seg, n):
    out = torch.zeros((n,) + src.shape[1:], dtype=src.dtype)
    return out.index_add_(0, seg, src)
def _pad(x, pw):
    flat = tuple(v for pair in reversed(pw) for v in pair)
    return torch.nn.functional.pad(x, flat)

kernel_name = 'concat_heads__gqa_block_cached__mha_block_cached__near_ridge'

def setup_inputs():

    _w = (lambda a: (lambda t: t.to(torch.bfloat16) if t.is_floating_point() else t)(torch.as_tensor(a)))
    def _A_setup():
        B, Sq, D = 8, 96, 640
        Hq, Hkv, Sk, Dh = 32, 32, 512, 128
        assert Hq % Hkv == 0, (Hq, Hkv)
        return {
            "x": _w((lambda *s: torch.randn(*s, dtype=torch.bfloat16) * 0.8)(B, Sq, D)),
            "k_cache": _w((lambda *s: torch.randn(*s, dtype=torch.bfloat16) * 0.8)(B, Hkv, Sk, Dh)),
            "v_cache": _w((lambda *s: torch.randn(*s, dtype=torch.bfloat16) * 0.05)(B, Hkv, Sk, Dh)),
            "wq": _w((lambda *s: torch.randn(*s, dtype=torch.bfloat16) * 0.8)(D, Hq * Dh) * (D ** -0.5)),
            "wo": _w((lambda *s: torch.randn(*s, dtype=torch.bfloat16) * 0.05)(Hq * Dh, D) * ((Hq * Dh) ** -0.5)),
        }
    _A_in = _A_setup()

    def _B_setup():
        B, Sq, D = 8, 96, 640
        H, Sk, Dh = 32, 512, 128
        return {
            "x": _w((lambda *s: torch.randn(*s, dtype=torch.bfloat16) * 0.8)(B, Sq, D)),
            "k_cache": _w((lambda *s: torch.randn(*s, dtype=torch.bfloat16) * 0.8)(B, H, Sk, Dh)),
            "v_cache": _w((lambda *s: torch.randn(*s, dtype=torch.bfloat16) * 0.05)(B, H, Sk, Dh)),
            "wq": _w((lambda *s: torch.randn(*s, dtype=torch.bfloat16) * 0.8)(D, H * Dh) * (D ** -0.5)),
            "wo": _w((lambda *s: torch.randn(*s, dtype=torch.bfloat16) * 0.05)(H * Dh, D) * ((H * Dh) ** -0.5)),
        }
    _B_in = _B_setup()

    return {
        "A_x": _A_in["x"],
        "A_k_cache": _A_in["k_cache"],
        "A_v_cache": _A_in["v_cache"],
        "A_wq": _A_in["wq"],
        "A_wo": _A_in["wo"],
        "B_x": _B_in["x"],
        "B_k_cache": _B_in["k_cache"],
        "B_v_cache": _B_in["v_cache"],
        "B_wq": _B_in["wq"],
        "B_wo": _B_in["wo"],
    }

def reference(A_x, A_k_cache, A_v_cache, A_wq, A_wo, B_x, B_k_cache, B_v_cache, B_wq, B_wo):
    def _A_ref(x, k_cache, v_cache, wq, wo):
        B, Sq, D = x.shape
        Hq, Dh = 32, 128
        Hkv = k_cache.shape[1]
        rep = Hq // Hkv
        q = (lambda x, *d: x.permute(*d))((x @ wq).reshape(B, Sq, Hq, Dh), 0, 2, 1, 3)
        k = (lambda x, n, axis: torch.repeat_interleave(x, n, dim=axis))(k_cache, rep, axis=1)
        v = (lambda x, n, axis: torch.repeat_interleave(x, n, dim=axis))(v_cache, rep, axis=1)
        scores = torch.einsum("bhqd,bhkd->bhqk", q, k) * (Dh ** -0.5)
        p = _softmax(scores, axis=-1)
        o = torch.einsum("bhqk,bhkd->bhqd", p, v)
        return (lambda x, *d: x.permute(*d))(o, 0, 2, 1, 3).reshape(B, Sq, Hq * Dh) @ wo

    def _B_ref(x, k_cache, v_cache, wq, wo):
        B, Sq, D = x.shape
        H, Dh = 32, 128
        q = (lambda x, *d: x.permute(*d))((x @ wq).reshape(B, Sq, H, Dh), 0, 2, 1, 3)
        scores = torch.einsum("bhqd,bhkd->bhqk", q, k_cache) * (Dh ** -0.5)
        p = _softmax(scores, axis=-1)
        o = torch.einsum("bhqk,bhkd->bhqd", p, v_cache)
        return (lambda x, *d: x.permute(*d))(o, 0, 2, 1, 3).reshape(B, Sq, H * Dh) @ wo

    a = _A_ref(A_x, A_k_cache, A_v_cache, A_wq, A_wo)
    b = _B_ref(B_x, B_k_cache, B_v_cache, B_wq, B_wo)
    return torch.concatenate([a, b], axis=-1)
```

```python
NAME = "concat_heads__gqa_block_cached__mha_block_cached__near_ridge"

HEADER_COMMENT = """; Kernarg layout for this problem (104 bytes, ptrs only, base s[0:1]):
"""

class Asm:
    def __init__(self):
        self.lines = []
        self.nlabel = 0
    def __call__(self, s=""):
        for l in s.split("\n"):
            self.lines.append(l)
    def label(self, name):
        self.lines.append(name + ":")
    def newlabel(self, base="L"):
        self.nlabel += 1
        return f"{base}_{self.nlabel}"
    def text(self):
        return "\n".join(self.lines) + "\n"

def kernel_begin(a, kname):
    a(".text")
    a(f".globl {kname}")
    a(".p2align 8")
    a(f".type {kname},@function")
    a(f"{kname}:")

def kernel_desc(a, kname, vgpr, sgpr, accum=None):
    if accum is None:
        accum = (vgpr + 3) // 4 * 4
    a('.section .rodata,"a"')
    a(".p2align 6")
    a(f".amdhsa_kernel {kname}")
    a(f"  .amdhsa_next_free_vgpr {vgpr}")
    a(f"  .amdhsa_next_free_sgpr {sgpr}")
    a(f"  .amdhsa_accum_offset {accum}")
    a("  .amdhsa_group_segment_fixed_size 0")
    a("  .amdhsa_kernarg_size 104")
    a("  .amdhsa_user_sgpr_count 2")
    a("  .amdhsa_user_sgpr_kernarg_segment_ptr 1")
    a("  .amdhsa_system_sgpr_workgroup_id_x 1")
    a(".end_amdhsa_kernel")

def vr(lo, n):
    return f"v{lo}" if n == 1 else f"v[{lo}:{lo+n-1}]"
def ar(lo, n):
    return f"a{lo}" if n == 1 else f"a[{lo}:{lo+n-1}]"
def sr(lo, n):
    return f"s{lo}" if n == 1 else f"s[{lo}:{lo+n-1}]"
```

```python
import sys, struct, math
from asmlib import *
import hazard

MF = "v_mfma_f32_32x32x16_bf16"
OBASE = 0
WBASE = 40960
KBASE = 73728
VBASE = 106496
XBASE = 139264
LDSSZ = 163840
WS_O, WS_P, WS_F1, WS_F2 = 0, 0x1000000, 0x2000000, 0x2010000
STAMP = 0x0F000000
QSCALE = struct.unpack("<I", struct.pack("<f", math.log2(math.e) / math.sqrt(128.0)))[0]
THRESH = 0x41000000
SPIN = 1 << 16

sX, sK, sV, sW, sWS, sWO, sOUT, sDBG = 8, 12, 16, 20, 24, 28, 32, 4
sWAVE, sB, sHH, sJ, sBLK = 36, 37, 38, 39, 40
sT0, sT1, sT2, sT3 = 41, 42, 43, 44
sCL = 45
sRET = 46
sCNT = 48
sF1, sF2 = 49, 63
sWg, sWl, sWend, sXg, sXl, sXend, sKg, sKl, sVg, sVl = 50, 51, 52, 53, 54, 55, 56, 57, 58, 59
sOg, sOl, sOend = 60, 61, 62
sBg, sBl, sBend = 100, 101, 3
sOoff, sTH, sQS, sPoff = 50, 51, 52, 54
sST = 64
sLD = 88
sPC = 96
sEX = 98

def srd(a, d, lo, hi, size):
    if d != lo: a(f"s_mov_b32 s{d}, s{lo}")
    a(f"s_and_b32 s{d+1}, s{hi}, 0xffff")
    a(f"s_mov_b32 s{d+2}, {size}")
    a(f"s_mov_b32 s{d+3}, 0x20000")

class Stamps:
    def __init__(self, on): self.on = on
    def stamp(self, a, k):
        if self.on == 1: a(f"s_memrealtime s[{sST+2*k}:{sST+2*k+1}]")
        if self.on == 2: a(f"s_memtime s[{sST+2*k}:{sST+2*k+1}]")
    def flush(self, a, ks, base=0):
        if not self.on: return
        a("s_waitcnt lgkmcnt(0)")
        a(f"s_lshl_b32 s{sT0}, s2, 8")
        a(f"s_add_u32 s{sT0}, s{sT0}, {STAMP}")
        a("v_mov_b32 v26, 0")
        a("s_mov_b64 exec, 1")
        for k in ks:
            a(f"v_mov_b32 v28, s{sST+2*k}")
            a(f"v_mov_b32 v29, s{sST+2*k+1}")
            a(f"buffer_store_dwordx2 v[28:29], v26, s[{sWS}:{sWS+3}], s{sT0} offen offset:{8*(k+base)}")
            a("s_nop 1")
        a("s_waitcnt vmcnt(0)")
        a("s_mov_b64 exec, -1")

def spread(ops, ngaps, start=0):
    out = [[] for _ in range(ngaps)]
    ops = [(x, 4) if isinstance(x, str) else x for x in ops]
    tot = sum(c for _, c in ops); n = ngaps - start
    acc = 0.0
    for t, c in ops:
        g = start + min(n - 1, int((acc + c / 2.0) * n / tot))
        out[g].append(t); acc += c
    return out

def merge(*ls):
    n = max(len(l) for l in ls)
    return [sum((l[g] if g < len(l) else [] for l in ls), []) for g in range(n)]

def emit_tick(a, mfmas, fillers, pre=()):
    seq = list(pre)
    for g, m in enumerate(mfmas):
        seq.append(m)
        if g < len(fillers): seq += fillers[g]
    for g in range(len(mfmas), len(fillers)): seq += fillers[g]
    ins, _ = hazard.parse("\n".join(seq))
    assert len(ins) == len(seq)
    issued = []
    done = 0
    for i, t in zip(ins, seq):
        if i.mfma or i.valu:
            needi = -1
            for k, w in enumerate(issued):
                if k >= done and (w & i.r): needi = k
            if needi >= 0:
                n = min(15, len(issued) - needi - 1)
                a(f"s_waitcnt lgkmcnt({n})")
                done = len(issued) - n
        a(t)
        if i.ds: issued.append(i.w)

aK, aV, aW, aX, aO, aB = 1, 9, 13, 17, 21, 22
vL16, vL0, vL1, vM0, vM1 = 23, 24, 25, 26, 27
vT = 28
vP, vNEG, vS = 32, 48, (64, 96)
vPK = 32
vQA = 128
vWF, vXF = 192, 224
aWF2, vXF2 = 96, 232
vOA = 128
vOF, vBF = 208, 248
aOF2 = 64
aPB = 128
AO, AQ, AKF, AVF = 0, 64, 128, 192

def R(kind, lo, n): return f"{kind}[{lo}:{lo+n-1}]"

def softmax_ops(S, lo, hi):
    ops = []; pend = []
    for j in range(lo, hi, 2):
        ops.append((f"v_exp_f32 v{S+j}, v{S+j}", 8))
        ops.append((f"v_exp_f32 v{S+j+1}, v{S+j+1}", 8))
        ops += pend
        pend = [(f"v_add_f32 v{vL0}, v{vL0}, v{S+j}", 4), (f"v_add_f32 v{vL1}, v{vL1}, v{S+j+1}", 4),
                (f"v_cvt_pk_bf16_f32 v{vP+j//2}, v{S+j}, v{S+j+1}", 4)]
    if pend: ops.append(("s_nop 0", 4))
    return ops + pend

def max_ops(S):
    ops = []
    for sub, m in ((0, vM0), (1, vM1)):
        b = S + 16 * sub
        ops.append(f"v_max3_f32 v{m}, v{b}, v{b+1}, v{b+2}")
        for j in range(3, 15, 2): ops.append(f"v_max3_f32 v{m}, v{m}, v{b+j}, v{b+j+1}")
    ops.append(f"v_max3_f32 v{vM0}, v{vM0}, v{S+15}, v{S+31}")
    ops.append(f"v_max_f32 v{vM0}, v{vM0}, v{vM1}")
    return ops

def k_reads(slot):
    return [f"ds_read_b128 {R('a', AKF+(sub*8+ks)*4, 4)}, v{aK+ks} offset:{slot*16384+sub*8192}" for sub in range(2) for ks in range(8)]
def v_reads(slot):
    return [f"ds_read_b64_tr_b16 {R('a', AVF+(ks*4+dt)*4+2*t, 2)}, v{aV+dt} offset:{slot*16384+ks*4096+t*2048}"
            for ks in range(4) for dt in range(4) for t in range(2)]
def qk_mfmas(S, first_c):
    r = []
    for sub in range(2):
        for ks in range(8):
            d = R('v', S + 16 * sub, 16)
            r.append(f"{MF} {d}, {R('a', AKF+(sub*8+ks)*4, 4)}, {R('a', AQ+4*ks, 4)}, {d if ks else first_c}")
    return r
def pv_mfmas():
    return [f"{MF} {R('a', AO+16*dt, 16)}, {R('a', AVF+(ks*4+dt)*4, 4)}, {R('v', vP+4*ks, 4)}, {R('a', AO+16*dt, 16)}"
            for ks in range(4) for dt in range(4)]
def zero_mfma(kind, lo): return f"{MF} {R(kind, lo, 16)}, v[{vT}:{vT+3}], v[{vT}:{vT+3}], 0"

def q_reads(c, buf=0):
    wk, wb, xb = (('v', vWF, vXF), ('a', aWF2, vXF2))[buf]
    u = c & 3
    xr = [f"ds_read_b128 {R('v', xb+4*ks, 4)}, v{aX+2*(u&1)+ks} offset:{(u>>1)*12288}" for ks in range(2)]
    def wr(ks): return [f"ds_read_b64_tr_b16 {R(wk, wb+(ks*4+dt)*4+2*t, 2)}, v{aW+dt} offset:{u*8192+ks*4096+t*1024}" for dt in range(4) for t in range(2)]
    return [xr[0]] + wr(0) + [xr[1]] + wr(1)
def q_mfmas(buf=0):
    wk, wb, xb = (('v', vWF, vXF), ('a', aWF2, vXF2))[buf]
    return [f"{MF} {R('v', vQA+16*dt, 16)}, {R(wk, wb+(ks*4+dt)*4, 4)}, {R('v', xb+4*ks, 4)}, {R('v', vQA+16*dt, 16)}" for ks in range(2) for dt in range(4)]
def o_wreads(slot, buf=0, ks_list=(0, 1)):
    k, b = (('v', vOF), ('a', aOF2))[buf]
    base = slot * 10240
    areg = aO if base < 61440 else (aK if base < 122880 else aK + 1)
    base -= 61440 * (base // 61440)
    return [f"ds_read_b64_tr_b16 {R(k, b+(ks*5+ct)*4+2*t, 2)}, v{areg} offset:{base+ks*5120+t*1280+ct*64}" for ks in ks_list for ct in range(5) for t in range(2)]
def o_breads(slot):
    return [f"ds_read_b128 {R('v', vBF+4*ks, 4)}, v{aB} offset:{slot*6144+ks*1024}" for ks in range(2)]
def o_reads(c):
    b = o_breads(c & 3)
    return [b[0]] + o_wreads(c & 3, 0, (0,)) + [b[1]] + o_wreads(c & 3, 0, (1,))
def o_mfmas(buf=0, bk='v', bb=vBF):
    k, b = (('v', vOF), ('a', aOF2))[buf]
    return [f"{MF} {R('v', vOA+16*ct, 16)}, {R(k, b+(ks*5+ct)*4, 4)}, {R(bk, bb+4*ks, 4)}, {R('v', vOA+16*ct, 16)}" for ks in range(2) for ct in range(5)]

def proj(kind, tick):
    if kind == 'Q': return q_reads(tick), q_mfmas()
    if kind == 'O' and 2 <= tick <= 16: return o_reads(tick - 2), o_mfmas()
    return [], []

def crosshalf_ops(r, t, op):
    return [f"v_mov_b32 v{t}, v{r}", "s_nop 1", f"v_permlane32_swap_b32 v{r}, v{t}", "s_nop 0", f"{op} v{r}, v{r}, v{t}"]

def rare_check(a, nxt):
    a(f"v_cmp_lt_f32 vcc, s{sTH}, v{vM0}")
    lab = a.newlabel("L_norare")
    a(f"s_cbranch_vccz {lab}")
    a(f"s_call_b64 s[{sRET}:{sRET+1}], L_rare{nxt}")
    a.label(lab)

def half_A(a, o, kind, tick, cur, nxt, slot):
    NA = o.get("NA", 24)
    pr, pm = proj(kind, tick)
    a("s_barrier")
    ng = 16 + len(pm)
    f0 = spread(pr + v_reads(slot), ng - 2)
    f2 = spread(softmax_ops(vS[cur], 0, NA), ng)
    emit_tick(a, qk_mfmas(vS[nxt], R('v', vNEG, 16)) + pm, merge(f0, f2))
    a("s_waitcnt lgkmcnt(0)")

def half_B(a, o, kind, tick, cur, nxt, slot, kread=True):
    NA = o.get("NA", 24)
    pr, pm = proj(kind, tick)
    a("s_barrier")
    ng = 16 + len(pm)
    f0 = spread(pr + (k_reads(slot) if kread else []), ng - 2 if kread else 12)
    f2 = spread(softmax_ops(vS[cur], NA, 32), 10) if NA < 32 else [[]]
    f3 = spread(max_ops(vS[nxt]), ng, start=10)
    emit_tick(a, pv_mfmas() + pm, merge(f0, f2, f3))
    rare_check(a, nxt)
    a("s_waitcnt lgkmcnt(0)")

def rare(a, buf):
    S = vS[buf]
    a.label(f"L_rare{buf}")
    for t in crosshalf_ops(vM0, vT, "v_max_f32"): a(t)
    a(f"v_max_f32 v{vM0}, 0, v{vM0}")
    a(f"v_sub_f32 v{vM1}, 0, v{vM0}")
    a(f"v_exp_f32 v{vM1}, v{vM1}")
    a("s_nop 7")
    for j in range(32): a(f"v_sub_f32 v{S+j}, v{S+j}, v{vM0}")
    a("s_branch L_rescaleO")

def rescaleO(a):
    a.label("L_rescaleO")
    for j in range(16): a(f"v_sub_f32 v{vNEG+j}, v{vNEG+j}, v{vM0}")
    a(f"v_mul_f32 v{vL0}, v{vL0}, v{vM1}")
    a(f"v_mul_f32 v{vL1}, v{vL1}, v{vM1}")
    for j in range(0, 64, 4):
        for k in range(4): a(f"v_accvgpr_read_b32 v{vT+k}, a{AO+j+k}")
        for k in range(4): a(f"v_mul_f32 v{vT+k}, v{vT+k}, v{vM1}")
        for k in range(4): a(f"v_accvgpr_write_b32 a{AO+j+k}, v{vT+k}")
    a("s_nop 1")
    a(f"s_setpc_b64 s[{sRET}:{sRET+1}]")

def q_convert(a):
    for dt in range(4):
        b = vQA + 16 * dt
        for m in range(8): a(f"v_pk_mul_f32 v[{b+2*m}:{b+2*m+1}], v[{b+2*m}:{b+2*m+1}], s[{sQS}:{sQS+1}]")
        for m in range(8): a(f"v_cvt_pk_bf16_f32 v{b+m}, v{b+2*m}, v{b+2*m+1}")
        for m in range(8): a(f"v_accvgpr_write_b32 a{AQ+8*dt+m}, v{b+m}")

def finalize_ops(o, dts, pk):
    ops = []
    for dt in dts:
        b = 64 + 16 * dt
        ops += [f"v_accvgpr_read_b32 v{b+j}, a{AO+16*dt+j}" for j in range(16)]
        if pk:
            ops += [f"v_pk_mul_f32 v[{b+2*m}:{b+2*m+1}], v[{b+2*m}:{b+2*m+1}], v[{vM0}:{vM0+1}] op_sel_hi:[1,0]" for m in range(8)]
        else:
            ops += [f"v_mul_f32 v{b+j}, v{b+j}, v{vM0}" for j in range(16)]
        ops += [f"v_cvt_pk_bf16_f32 v{vPK+8*dt+m}, v{b+2*m}, v{b+2*m+1}" for m in range(8)]
        ops.append(f"s_add_u32 s{sT0}, s{sOoff}, {dt*6144}")
        for u in range(2):
            ops.append(f"buffer_store_dwordx4 {R('v', vPK+8*dt+4*u, 4)}, v{vL16}, s[{sWS}:{sWS+3}], s{sT0} offen offset:{u*1024} sc1")
    return ops

def flag_store(a, soff, val):
    a(f"v_mov_b32 v{vT}, {val}")
    a(f"v_mov_b32 v{vT+1}, 0")
    a("s_mov_b64 exec, 1")
    a(f"buffer_store_dword v{vT}, v{vT+1}, s[{sWS}:{sWS+3}], s{soff} offen sc1")
    a("s_mov_b64 exec, -1")

def wave_poll(a, sline, val, tag):
    a(f"v_lshlrev_b32 v{vT+1}, 4, v0")
    a(f"s_and_b32 s{sT0}, s{sline}, 0xffffffcf")
    a(f"s_mov_b32 s{sT1}, 0")
    a("s_mov_b64 exec, 15")
    a.label(f"L_wp{tag}")
    a(f"buffer_load_dword v{vT}, v{vT+1}, s[{sWS}:{sWS+3}], s{sT0} offen sc1")
    a(f"s_add_u32 s{sT1}, s{sT1}, 1")
    a(f"s_cmp_ge_u32 s{sT1}, {SPIN}")
    a(f"s_cbranch_scc1 L_wpd{tag}")
    a("s_waitcnt vmcnt(0)")
    a(f"v_cmp_gt_u32 vcc, {val}, v{vT}")
    a(f"s_cbranch_vccnz L_wp{tag}")
    a.label(f"L_wpd{tag}")
    a("s_mov_b64 exec, -1")

def gen_round(a, o, st, kind):
    tg = kind
    pr, pm = proj(kind, 0)
    a("s_barrier")
    pre = pr + k_reads(0)
    if kind == 'O':
        pre += [f"ds_write_b128 v{aB}, {R('v', vPK+4*f, 4)} offset:{(f>>1)*6144+(f&1)*1024}" for f in range(8)]
    pre += [f"v_mov_b32 v{vT+j}, 0" for j in range(4)] + [f"v_mov_b32 v{vL0}, 0", f"v_mov_b32 v{vL1}, 0"]
    zs = [zero_mfma('a', AO + 16 * t) for t in range(4)]
    if kind == 'O': zs += [zero_mfma('v', vOA + 16 * t) for t in range(5)]
    emit_tick(a, zs + pm + qk_mfmas(vS[0], "0"), [], pre=pre)
    a("s_waitcnt lgkmcnt(0)")
    pr, pm = proj(kind, 1)
    a("s_barrier")
    val = max_ops(vS[0]) + crosshalf_ops(vM0, vT, "v_max_f32") + [f"v_sub_f32 v{vS[0]+j}, v{vS[0]+j}, v{vM0}" for j in range(32)] \
        + [f"v_sub_f32 v{vNEG+j}, 0, v{vM0}" for j in range(16)]
    if pm:
        emit_tick(a, pm, spread(val[20:], len(pm)), pre=pr + k_reads(1) + val[:20])
    else:
        emit_tick(a, [], [], pre=k_reads(1) + val)
    if kind == 'O':
        a("s_waitcnt vmcnt(0)")
        flag_store(a, sF1, 1)
    a(f"s_mov_b32 s{sCNT}, 0")
    a("s_waitcnt lgkmcnt(0)")
    a.label(f"L_tloop{tg}")
    half_A(a, o, kind, 2, 0, 1, 0)
    a(f"s_cmp_eq_u32 s{sCNT}, 3")
    a(f"s_cbranch_scc1 L_ttail{tg}")
    half_B(a, o, kind, 3, 0, 1, 0)
    half_A(a, o, kind, 4, 1, 0, 1)
    a(f"s_add_u32 s{sCNT}, s{sCNT}, 1")
    half_B(a, o, kind, 5, 1, 0, 1)
    a(f"s_branch L_tloop{tg}")
    a.label(f"L_ttail{tg}")
    half_B(a, o, kind, 15, 0, 1, 0, kread=False)
    pr, pm = proj(kind, 16)
    a("s_barrier")
    sm = softmax_ops(vS[1], 0, 32)
    lfin = [f"v_add_f32 v{vL0}, v{vL0}, v{vL1}"] + crosshalf_ops(vL0, vT, "v_add_f32") + [f"v_rcp_f32 v{vM0}, v{vL0}"]
    emit_tick(a, pm, spread(sm[24:] + lfin, len(pm)), pre=pr + [t for t, _ in sm[:24]])
    a("s_waitcnt lgkmcnt(0)")
    pr, pm = proj(kind, 17)
    a("s_barrier")
    if kind == 'O': st.stamp(a, 3)
    vr_ = v_reads(1)
    if kind == 'Q':
        emit_tick(a, pv_mfmas() + pm, spread(vr_[12:] + pr, 14), pre=vr_[:12])
        a("s_waitcnt lgkmcnt(0)")
        for tick, dts in ((18, (0, 1)), (19, (2, 3))):
            pr, pm = proj(kind, tick)
            a("s_barrier")
            fo = finalize_ops(o, dts, False)
            emit_tick(a, pm, spread(fo[30:], len(pm)), pre=pr + fo[:30])
            a("s_waitcnt lgkmcnt(0)")
        a("s_nop 7")
        q_convert(a)
        a(f"s_add_u32 s{sOoff}, s{sOoff}, 24576")
    else:
        emit_tick(a, pv_mfmas(), spread(vr_[12:] + o_reads(15), 14), pre=vr_[:12])

def tail_slot(c):
    return {15: 3, 16: 4, 17: 5, 18: 6, 19: 7, 20: 8, 21: 9, 22: 10, 23: 11, 24: 0, 25: 1, 26: 2, 27: 12, 28: 3, 29: 4, 30: 5, 31: 6}[c]

def gen_tail(a, o, st):
    a(f"v_add_u32 v{aK}, 61440, v{aO}")
    a(f"v_add_u32 v{aK+1}, 122880, v{aO}")
    a("s_nop 7")
    for t in finalize_ops(o, range(4), True): a(t)
    st.stamp(a, 4)
    a("s_waitcnt lgkmcnt(0)")
    def chunk(c, nextreads, extra=()):
        buf = (c - 15) & 1
        if c == 15: m = o_mfmas(buf)
        elif c < 20: m = o_mfmas(buf, 'v', vPK + 8 * (c - 16))
        else: m = o_mfmas(buf, 'a', aPB + 8 * (c - 20))
        fl = spread(nextreads, 9) if nextreads else [[]]
        if extra: fl = merge(fl, spread(list(extra), 10))
        emit_tick(a, m, fl)
        a("s_waitcnt lgkmcnt(0)")
    vPA, vOUT = 3, 6
    ex = []
    for i in range(3):
        ex += [f"v_add_u32 v{vT}, {64*i}, v0",
               f"v_lshrrev_b32 v{vT+1}, 3, v{vT}",
               f"v_and_b32 v{vT}, 7, v{vT}",
               f"v_lshlrev_b32 v{vPA+i}, 9, v{vT+1}",
               f"v_lshl_add_u32 v{vPA+i}, v{vT}, 4, v{vPA+i}",
               f"v_mul_u32_u24 v{vOUT+i}, 2560, v{vT}",
               f"v_lshl_add_u32 v{vOUT+i}, v{vT+1}, 4, v{vOUT+i}"]
    for c in range(15, 20):
        chunk(c, o_wreads(tail_slot(c + 1), (c + 1 - 15) & 1) if c < 19 else [], ex[7 * (c - 15):7 * (c - 14)] if c < 18 else ())
    a("s_waitcnt vmcnt(0)")
    flag_store(a, sF1, 2)
    st.stamp(a, 5)
    a("s_barrier")
    for r in o_wreads(tail_slot(20), (20 - 15) & 1): a(r)
    wave_poll(a, sF1, 2, "1")
    st.stamp(a, 6)
    a(f"s_lshl_b32 s{sT2}, s{sHH}, 1")
    a(f"s_mul_i32 s{sT2}, s{sT2}, 24576")
    a(f"s_sub_u32 s{sT2}, s{sOoff}, s{sT2}")
    for p in range(3):
        a(f"s_add_u32 s{sT0}, s{sHH}, {p+1}")
        a(f"s_and_b32 s{sT0}, s{sT0}, 3")
        a(f"s_mul_i32 s{sT0}, s{sT0}, 49152")
        a(f"s_add_u32 s{sT0}, s{sT0}, s{sT2}")
        for cc in range(4):
            for ks in range(2):
                a(f"buffer_load_dwordx4 {R('a', aPB+(p*8+cc*2+ks)*4, 4)}, v{vL16}, s[{sWS}:{sWS+3}], s{sT0} offen offset:{ks*1024} sc1")
            if cc < 3: a(f"s_add_u32 s{sT0}, s{sT0}, 6144")
    a("s_waitcnt lgkmcnt(0)")
    for c in range(20, 32):
        if c == 26: a("s_barrier")
        a(f"s_waitcnt vmcnt({22 - 2 * (c - 20)})")
        chunk(c, o_wreads(tail_slot(c + 1), (c + 1 - 15) & 1) if c < 31 else [])
    st.stamp(a, 7)
    a("s_nop 4")
    a(f"s_add_u32 s{sT0}, s{sPoff}, 4096")
    a(f"s_add_u32 s{sT1}, s{sPoff}, 8192")
    for ct in range(5):
        b = vOA + 16 * ct
        for m in range(8): a(f"v_cvt_pk_bf16_f32 v{64+8*ct+m}, v{b+2*m}, v{b+2*m+1}")
        for u in range(2):
            f = 2 * ct + u
            a(f"buffer_store_dwordx4 {R('v', 64+4*f, 4)}, v{vL16}, s[{sWS}:{sWS+3}], s{(sPoff, sT0, sT1)[f>>2]} offen offset:{(f&3)*1024} sc1")
    a(f"s_mul_i32 s{sT2}, s{sJ}, {30720-128}")
    a(f"s_sub_u32 s{sT2}, s{sPoff}, s{sT2}")
    a(f"s_mul_i32 s{sT3}, s{sB}, 96")
    a(f"s_lshl_b32 s{sT0}, s{sWAVE}, 5")
    a(f"s_add_u32 s{sT3}, s{sT3}, s{sT0}")
    a(f"s_lshl_b32 s{sT0}, s{sJ}, 3")
    a(f"s_add_u32 s{sT3}, s{sT3}, s{sT0}")
    a(f"s_mul_i32 s{sT3}, s{sT3}, 2560")
    a(f"s_mul_i32 s{sT0}, s{sBLK}, 1280")
    a(f"s_add_u32 s{sT3}, s{sT3}, s{sT0}")
    a(f"s_mul_i32 s{sT0}, s{sHH}, 320")
    a(f"s_add_u32 s{sT3}, s{sT3}, s{sT0}")
    a("s_waitcnt vmcnt(0)")
    flag_store(a, sF2, 1)
    st.stamp(a, 8)
    wave_poll(a, sF2, 1, "2")
    st.stamp(a, 9)
    for i in range(3):
        if i == 2: a("s_mov_b32 exec_hi, 0")
        for j in range(4):
            a(f"s_add_u32 s{sT0}, s{sT2}, {j*30720}")
            a(f"buffer_load_dwordx4 {R('v', 128+16*i+4*j, 4)}, v{vPA+i}, s[{sWS}:{sWS+3}], s{sT0} offen sc1")
    a("s_mov_b64 exec, -1")
    a(f"s_mov_b32 s{sT1}, 0xffff0000")
    for i in range(3):
        a(f"s_waitcnt vmcnt({8 - 4 * i + i})")
        if i == 2: a("s_mov_b32 exec_hi, 0")
        for d in range(4):
            for j in range(4):
                a(f"v_lshlrev_b32 v{64+j}, 16, v{128+16*i+4*j+d}")
                a(f"v_and_b32 v{68+j}, s{sT1}, v{128+16*i+4*j+d}")
            a("v_add_f32 v64, v64, v65"); a("v_add_f32 v66, v66, v67"); a("v_add_f32 v68, v68, v69"); a("v_add_f32 v70, v70, v71")
            a("v_add_f32 v64, v64, v66"); a("v_add_f32 v68, v68, v70")
            a(f"v_cvt_pk_bf16_f32 v{72+4*i+d}, v64, v68")
        a(f"buffer_store_dwordx4 {R('v', 72+4*i, 4)}, v{vOUT+i}, s[{sOUT}:{sOUT+3}], s{sT3} offen{o.get('outpol','')}")
    a("s_mov_b64 exec, -1")

NT = 60
def loader_schedule(variant, o):
    DW, DKV, DO = o.get("DW", 3), o.get("DKV", 3), o.get("DO", 3)
    need = {}; free = {}
    for c in range(40):
        need[("W", c)] = c; free[("W", c)] = c - 2 if c >= 4 else 0
    for m in range(20):
        need[("X", m)] = 2 * m; free[("X", m)] = 2 * m - 1 if m >= 2 else 0
    def tK(i): r, i = divmod(i, 8); return 20 + 20 * r + (0 if i == 0 else 2 * i - 1)
    def tV(i): r, i = divmod(i, 8); return 20 + 20 * r + (17 if i == 7 else 2 * i + 2)
    early = {}
    for i in range(16):
        need[("K", i)] = tK(i); free[("K", i)] = tK(i - 2) + 2 if i >= 2 else 0
        need[("V", i)] = tV(i); free[("V", i)] = tV(i - 2) + 2 if i >= 2 else 0
    for it in (("V", 7), ("K", 8), ("K", 9), ("V", 8), ("V", 9), ("V", 15)): early[it] = True
    for c in range(32):
        if c <= 14: n = 42 + c; f = (42 + c - 4 + 2) if c >= 4 else 0
        elif c <= 19: n = 57; f = {15: 42 + 11 + 2, 16: 41, 17: 41, 18: 41, 19: tK(14) + 2}[c]
        elif c <= 26: n = 58; f = {20: tK(15) + 2, 21: tK(15) + 2, 22: tV(14) + 2, 23: tV(14) + 2, 24: 42 + 12 + 2, 25: 42 + 13 + 2, 26: 42 + 14 + 2}[c]
        else: n = 59; f = 59
        need[("O", c)] = n; free[("O", c)] = f
        if c >= 15: early[("O", c)] = True
    for c in range(4, 16):
        need[("B", c)] = 42 + c if c <= 14 else 57
        free[("B", c)] = 42 + c - 4 + 2
    sched = [[] for _ in range(NT + 1)]
    placed = {}
    if variant == "D":
        for it in (("K", 0), ("K", 1), ("V", 0), ("V", 1)):
            sched[0].append(it); placed[it] = 0
    prio = {"K": 0, "V": 0, "X": 1, "W": 2, "B": 3, "O": 4}
    last = {k: 0 for k in prio}
    pos = {}
    for typ in prio:
        for it in sorted([x for x in need if x[0] == typ and x not in placed], key=lambda x: x[1]):
            d = {"W": DW, "X": DW, "K": DKV, "V": DKV, "O": DO, "B": 2}[typ]
            s = max(free[it], 0 if it in early else need[it] - d + 1, 0, last[typ])
            assert s <= need[it], it
            pos[it] = s; last[typ] = s
    for it in sorted(pos, key=lambda x: (min(need[x], pos[x] + 2), prio[x[0]], x[1])):
        sched[pos[it]].append(it)
    extra = {}
    sched[38].insert(0, ("G", 0)); need[("G", 0)] = 39
    sched[40].insert(0, ("CG", 0))
    for p in range(3):
        s = pos[("B", 4 + 4 * p)]
        sched[s - 1].insert(0, ("F", p)); need[("F", p)] = s - 1
        i = sched[s].index(("B", 4 + 4 * p))
        sched[s].insert(i, ("CF", p))
    tt = o.get("touch_tick", 30)
    if tt >= 0: sched[tt].append(("T", 0)); need[("T", 0)] = 999
    return sched, need

def emit_loader_schedule(a, variant, st, o):
    sched, need = loader_schedule(variant, o)
    cnt = {"W": 8, "X": 12, "K": 16, "V": 16, "O": 10, "B": 6, "G": 1, "F": 1, "T": 5}
    issued = []; total = 0
    vF, vG = 24, 25
    for t in range(NT):
        for it in sched[t]:
            ty, c = it
            if ty == "CG":
                lab = a.newlabel("L_cg")
                a(f"v_cmp_ne_u32 vcc, s{sCNT}, v{vG}")
                a("s_and_b32 vcc_lo, vcc_lo, 15")
                a(f"s_cbranch_scc0 {lab}")
                a(f"s_call_b64 s[{sRET}:{sRET+1}], L_spinG")
                a.label(lab)
                continue
            if ty == "CF":
                lab = a.newlabel("L_cf")
                a(f"s_add_u32 s{sT1}, s{sHH}, {c+1}")
                a(f"s_and_b32 s{sT1}, s{sT1}, 3")
                a(f"s_lshl_b32 s{sT1}, s{sT1}, 2")
                a(f"s_lshl_b32 s{sT1}, 7, s{sT1}")
                a(f"v_cmp_gt_u32 vcc, 1, v{vF}")
                a(f"s_and_b32 vcc_lo, vcc_lo, s{sT1}")
                a(f"s_cbranch_scc0 {lab}")
                a(f"s_call_b64 s[{sRET}:{sRET+1}], L_spinF")
                a.label(lab)
                continue
            if ty == "G":
                a(f"buffer_load_dword v{vG}, v26, s[{sDBG}:{sDBG+3}], s{sCL} offen sc1")
            elif ty == "F":
                a(f"buffer_load_dword v{vF}, v27, s[{sWS}:{sWS+3}], s{sF1} offen sc1")
            else:
                if ty == "W" and c == 20:
                    a(f"s_add_u32 s{sWg}, s{sWg}, 256")
                    a(f"s_add_u32 s{sWend}, s{sWend}, 256")
                if ty == "O":
                    a(f"s_mov_b32 s{sOl}, {OBASE + 10240 * (tail_slot(c) if c >= 15 else (c & 3))}")
                    if c == 16:
                        a(f"s_add_u32 s{sOg}, s{sOg}, {128*1280}")
                        a(f"s_add_u32 s{sOend}, s{sOend}, {128*1280}")
                a(f"s_call_b64 s[{sRET}:{sRET+1}], L_iss{ty}")
                if ty == "O" and c % 4 == 3:
                    a(f"s_call_b64 s[{sRET}:{sRET+1}], L_nextO")
                if ty == "B" and c % 4 == 3:
                    a(f"s_call_b64 s[{sRET}:{sRET+1}], L_nextB")
            total += cnt[ty]; issued.append((it, total))
        req = max(c for it, c in issued if need[it] <= t)
        if st.on and t > 0:
            a("s_waitcnt lgkmcnt(0)")
            a(f"v_writelane_b32 v30, s70, {t-1}")
            if o.get("trace2"):
                a("s_memrealtime s[72:73]")
        a(f"s_waitcnt vmcnt({min(63, total - req)})")
        if st.on and t > 0 and o.get("trace2"):
            a("s_memrealtime s[74:75]")
            a("s_waitcnt lgkmcnt(0)")
            a(f"v_writelane_b32 v31, s72, {t}")
            a(f"v_writelane_b32 v32, s74, {t}")
        a("s_barrier")
        if st.on: a("s_memrealtime s[70:71]")
        if t == 0: st.stamp(a, 0)
        if t == 20: st.stamp(a, 1)
    if st.on:
        a("s_waitcnt lgkmcnt(0)")
        a(f"v_writelane_b32 v30, s70, {NT-1}")

def gen_kernel(a, o):
    st = Stamps(o.get("stamps", 0))
    k = NAME + "_kernel"
    kernel_begin(a, k)
    a("s_cmp_ge_u32 s2, 256")
    a("s_cbranch_scc1 L_exit")
    st.stamp(a, 0)
    a(f"s_and_b32 s{sT0}, s2, 7")
    a(f"s_lshr_b32 s{sBLK}, s{sT0}, 2")
    a(f"s_mul_i32 s{sT1}, s{sBLK}, 40")
    a(f"s_add_u32 s{sEX}, s0, s{sT1}")
    a(f"s_addc_u32 s{sEX+1}, s1, 0")
    a(f"s_load_dwordx8 s[{sLD}:{sLD+7}], s[{sEX}:{sEX+1}], 0")
    a(f"s_load_dwordx2 s[{sWO}:{sWO+1}], s[{sEX}:{sEX+1}], 32")
    a(f"s_load_dwordx2 s[{sOUT}:{sOUT+1}], s[0:1], 80")
    a(f"s_load_dwordx2 s[{sDBG}:{sDBG+1}], s[0:1], 88")
    a(f"s_load_dwordx2 s[{sWS}:{sWS+1}], s[0:1], 96")
    a(f"s_and_b32 s{sJ}, s{sT0}, 3")
    a(f"s_lshr_b32 s{sT0}, s2, 3")
    a(f"s_and_b32 s{sB}, s{sT0}, 7")
    a(f"s_lshr_b32 s{sHH}, s{sT0}, 3")
    a(f"s_getpc_b64 s[{sPC}:{sPC+1}]")
    a("L_pc:")
    a(f"s_mov_b32 s{sT0}, L_exit-L_pc")
    a("v_lshrrev_b32 v1, 6, v0")
    a("v_lshlrev_b32 v2, 7, v0")
    a(f"v_readfirstlane_b32 s{sWAVE}, v1")
    a("v_and_b32 v0, 63, v0")
    a(f"s_cmp_eq_u32 s{sWAVE}, 3")
    a("s_cbranch_scc1 L_nopf2")
    for rep in range(2):
        if rep: a("v_add_u32 v2, 24576, v2")
        a(f"v_cmp_gt_u32 vcc, s{sT0}, v2")
        a(f"s_and_saveexec_b64 s[{sRET}:{sRET+1}], vcc")
        a(f"s_cbranch_execz L_nopf{rep}")
        a(f"global_load_dword v47, v2, s[{sPC}:{sPC+1}]")
        a(f"L_nopf{rep}:")
        a(f"s_mov_b64 exec, s[{sRET}:{sRET+1}]")
    a("L_nopf2:")
    a(f"s_lshl_b32 s{sCL}, s{sBLK}, 3")
    a(f"s_add_u32 s{sCL}, s{sCL}, s{sB}")
    a(f"s_lshl_b32 s{sT1}, s{sJ}, 3")
    a(f"s_lshl_b32 s{sT0}, s{sHH}, 1")
    a(f"s_add_u32 s{sT1}, s{sT1}, s{sT0}")
    a(f"s_lshl_b32 s{sT2}, s{sB}, 5")
    a(f"s_add_u32 s{sT2}, s{sT2}, s{sT1}")
    a(f"s_lshl_b32 s{sT0}, s{sCL}, 2")
    a(f"s_add_u32 s{sF1}, s{sT0}, s{sJ}")
    a(f"s_lshl_b32 s{sF1}, s{sF1}, 7")
    a(f"s_add_u32 s{sF1}, s{sF1}, {WS_F1}")
    a(f"s_add_u32 s{sF2}, s{sT0}, s{sHH}")
    a(f"s_lshl_b32 s{sF2}, s{sF2}, 7")
    a(f"s_add_u32 s{sF2}, s{sF2}, {WS_F2}")
    a("s_waitcnt lgkmcnt(0)")
    srd(a, sX, sLD, sLD + 1, 983040)
    srd(a, sK, sLD + 2, sLD + 3, 0x2000000)
    srd(a, sV, sLD + 4, sLD + 5, 0x2000000)
    srd(a, sW, sLD + 6, sLD + 7, 5242880)
    srd(a, sWS, sWS, sWS + 1, 0x10000000)
    srd(a, sWO, sWO, sWO + 1, 5242880)
    srd(a, sOUT, sOUT, sOUT + 1, 8 * 96 * 1280 * 2)
    srd(a, sDBG, sDBG, sDBG + 1, 256)
    a(f"s_cmp_lg_u32 s{sWAVE}, 3")
    a("s_cbranch_scc1 L_awave")
    vK, vV, vW, vX, vO, vB = 4, 8, 9, 13, 17, 22
    a("v_lshrrev_b32 v1, 3, v0")
    a("v_and_b32 v2, 7, v0")
    for p in range(4):
        a(f"v_add_u32 v3, {8*p}, v1")
        a("v_bfe_u32 v23, v3, 1, 3")
        a("v_xor_b32 v23, v23, v2")
        a("v_lshlrev_b32 v23, 4, v23")
        a("v_mul_u32_u24 v3, 1280, v3")
        a("v_add_u32 v23, v23, v3")
        a(f"v_subrev_u32 v{vX+p}, {p*1024}, v23")
    a("v_lshrrev_b32 v1, 4, v0")
    a("v_and_b32 v2, 15, v0")
    a("v_lshlrev_b32 v3, 2, v1")
    a("v_xor_b32 v3, v3, v2")
    a("v_lshlrev_b32 v3, 4, v3")
    a(f"v_lshl_add_u32 v{vV}, v1, 8, v3")
    a(f"v_lshl_add_u32 v{vW}, v1, 13, v3")
    for p in range(1, 4): a(f"v_add_u32 v{vW+p}, {p*(4*8192-1024)}, v{vW}")
    for p in range(4):
        a(f"v_add_u32 v3, {4*p}, v1")
        a("v_xor_b32 v3, v3, v2")
        a("v_lshlrev_b32 v3, 4, v3")
        a(f"v_lshl_add_u32 v{vK+p}, v1, 8, v3")
    if o.get("rot", 1):
        a(f"s_mul_i32 s{sT0}, s{sB}, 5")
        a(f"s_lshr_b32 s{sT0}, s{sT0}, 2")
        a(f"s_mul_i32 s{sT3}, s{sHH}, 5")
        a(f"s_lshr_b32 s{sT3}, s{sT3}, 1")
        a(f"s_add_u32 s{sT0}, s{sT0}, s{sT3}")
        a(f"s_cmp_ge_u32 s{sT0}, 10")
        a(f"s_cselect_b32 s{sT3}, 10, 0")
        a(f"s_sub_u32 s{sT0}, s{sT0}, s{sT3}")
    else:
        a(f"s_mov_b32 s{sT0}, 0")
    a(f"s_lshl_b32 s{sWg}, s{sT1}, 8")
    a(f"s_add_u32 s{sWend}, s{sWg}, {640*8192}")
    a(f"s_lshl_b32 s{sT3}, s{sT0}, 19")
    a(f"s_add_u32 s{sWg}, s{sWg}, s{sT3}")
    a(f"s_mov_b32 s{sWl}, {WBASE}")
    a(f"s_mul_i32 s{sXg}, s{sB}, 122880")
    a(f"s_add_u32 s{sXend}, s{sXg}, 1280")
    a(f"s_lshl_b32 s{sT3}, s{sT0}, 7")
    a(f"s_add_u32 s{sXg}, s{sXg}, s{sT3}")
    a(f"s_mov_b32 s{sXl}, {XBASE}")
    a(f"s_lshl_b32 s{sKg}, s{sT2}, 17")
    a(f"s_mov_b32 s{sVg}, s{sKg}")
    a(f"s_mov_b32 s{sKl}, {KBASE}")
    a(f"s_mov_b32 s{sVl}, {VBASE}")
    def late_setup():
        for p in range(5):
            a(f"v_add_u32 v1, {64*p}, v0")
            a("v_mul_u32_u24 v2, 3277, v1")
            a("v_lshrrev_b32 v2, 16, v2")
            a("v_mul_u32_u24 v3, 20, v2")
            a("v_sub_u32 v3, v1, v3")
            a("v_mul_u32_u24 v2, 1280, v2")
            a("v_lshl_add_u32 v2, v3, 4, v2")
            a(f"v_subrev_u32 v{vO+p}, {(p*1024) if p < 4 else 0}, v2")
        a(f"v_lshlrev_b32 v{vB}, 4, v0")
        a("v_and_b32 v26, 3, v0")
        a("v_lshlrev_b32 v26, 2, v26")
        a("v_and_b32 v27, 15, v0")
        a("v_lshlrev_b32 v27, 2, v27")
        a("v_lshlrev_b32 v23, 7, v0")
        a(f"s_mov_b32 s{sCNT}, 0x01010101")
        a(f"s_mul_i32 s{sOg}, s{sJ}, {1024*1280}")
        a(f"s_mul_i32 s{sT0}, s{sHH}, 320")
        a(f"s_add_u32 s{sOg}, s{sOg}, s{sT0}")
        a(f"s_add_u32 s{sOend}, s{sOg}, {1024*1280}")
        a(f"s_mul_i32 s{sT0}, s{sHH}, {256*1280}")
        a(f"s_add_u32 s{sOg}, s{sOg}, s{sT0}")
        a(f"s_lshl_b32 s{sT0}, s{sCL}, 5")
        a(f"s_lshl_b32 s{sT1}, s{sJ}, 3")
        a(f"s_add_u32 s{sT0}, s{sT0}, s{sT1}")
        a(f"s_mul_i32 s{sBg}, s{sT0}, 24576")
        a(f"s_add_u32 s{sBend}, s{sBg}, {8*24576}")
        a(f"s_add_u32 s{sT0}, s{sHH}, 1")
        a(f"s_and_b32 s{sT0}, s{sT0}, 3")
        a(f"s_mul_i32 s{sT0}, s{sT0}, 49152")
        a(f"s_add_u32 s{sBg}, s{sBg}, s{sT0}")
        a(f"s_mov_b32 s{sBl}, {XBASE}")
        a(f"s_lshl_b32 s{sCL}, s{sCL}, 4")
    late_setup()
    if st.on:
        for i in range(3): a(f"v_mov_b32 v{30+i}, 0")
    ed = o.get("ed", "ED")
    if ed == "ED":
        a(f"s_bitcmp1_b32 s{sB}, 0")
        a("s_cbranch_scc1 L_schedD")
        emit_loader_schedule(a, "E", st, o)
        a("s_branch L_loader_end")
        a.label("L_schedD")
        emit_loader_schedule(a, "D", st, o)
        a.label("L_loader_end")
    else:
        emit_loader_schedule(a, ed, st, o)
    if st.on:
        a(f"s_lshl_b32 s{sT0}, s2, 10")
        a(f"s_add_u32 s{sT0}, s{sT0}, {STAMP + 0x100000}")
        a("v_lshlrev_b32 v29, 2, v0")
        for i in range(3):
            a(f"buffer_store_dword v{30+i}, v29, s[{sWS}:{sWS+3}], s{sT0} offen offset:{256*i}")
        a("s_nop 1")
    st.flush(a, [0, 1], base=11)
    a("s_endpgm")
    nod = o.get("nodma", "")
    def routine(name, srdn, vbase, nv, counts, sg, sl, gstep, pol, tail):
        a.label(f"L_iss{name}")
        for g, n in enumerate(counts):
            if g == 0:
                a(f"s_mov_b32 m0, s{sl}")
                a(f"s_mov_b32 s{sT0}, s{sg}")
            else:
                a(f"s_add_u32 m0, m0, 4096")
                a(f"s_add_u32 s{sT0}, s{sT0}, {gstep}")
            for p in range(n):
                if name not in nod:
                    a(f"buffer_load_dwordx4 v{vbase + (p if nv == 4 else 0)}, s[{srdn}:{srdn+3}], s{sT0} offen offset:{p*1024}{pol} lds")
        tail()
        a(f"s_setpc_b64 s[{sRET}:{sRET+1}]")
    def wrap(sg, send, span):
        a(f"s_cmp_ge_u32 s{sg}, s{send}")
        a(f"s_cselect_b32 s{sT0}, {span}, 0")
        a(f"s_sub_u32 s{sg}, s{sg}, s{sT0}")
    def tailW():
        a(f"s_add_u32 s{sWg}, s{sWg}, {32*8192}")
        wrap(sWg, sWend, 640 * 8192)
        a(f"s_add_u32 s{sWl}, s{sWl}, 8192")
        a(f"s_cmp_ge_u32 s{sWl}, {WBASE+32768}")
        a(f"s_cselect_b32 s{sWl}, {WBASE}, s{sWl}")
    def tailX():
        a(f"s_add_u32 s{sXg}, s{sXg}, 128")
        wrap(sXg, sXend, 1280)
        a(f"s_xor_b32 s{sXl}, s{sXl}, {XBASE ^ (XBASE + 12288)}")
    def tailK():
        a(f"s_add_u32 s{sKg}, s{sKg}, 16384")
        a(f"s_xor_b32 s{sKl}, s{sKl}, {KBASE ^ (KBASE + 16384)}")
    def tailV():
        a(f"s_add_u32 s{sVg}, s{sVg}, 16384")
        a(f"s_xor_b32 s{sVl}, s{sVl}, {VBASE ^ (VBASE + 16384)}")
    def tailB():
        a(f"s_add_u32 s{sBg}, s{sBg}, 6144")
        a(f"s_add_u32 s{sBl}, s{sBl}, 6144")
        a(f"s_cmp_ge_u32 s{sBl}, {XBASE+24576}")
        a(f"s_cselect_b32 s{sBl}, {XBASE}, s{sBl}")
    routine("X", sX, vX, 4, (4, 4, 4), sXg, sXl, 32 * 1280, o.get("xpol", ""), tailX)
    routine("W", sW, vW, 4, (4, 4), sWg, sWl, 16 * 8192, o.get("wpol", ""), tailW)
    routine("K", sK, vK, 4, (4, 4, 4, 4), sKg, sKl, 4096, o.get("kvpol", " nt"), tailK)
    routine("V", sV, vV, 1, (4, 4, 4, 4), sVg, sVl, 4096, o.get("kvpol", " nt"), tailV)
    routine("B", sWS, vB, 1, (4, 2), sBg, sBl, 4096, " sc1", tailB)
    a.label("L_issO")
    pol = o.get("wopol", "")
    for ks in range(2):
        a(f"s_mov_b32 m0, s{sOl}" if ks == 0 else "s_add_u32 m0, m0, 1024")
        a(f"s_add_u32 s{sT0}, s{sOg}, {ks*16*1280}")
        for p in range(4):
            if "O" not in nod: a(f"buffer_load_dwordx4 v{vO+p}, s[{sWO}:{sWO+3}], s{sT0} offen offset:{p*1024}{pol} lds")
        a("s_add_u32 m0, m0, 4096")
        a("s_nop 0")
        if "O" not in nod: a(f"buffer_load_dwordx4 v{vO+4}, s[{sWO}:{sWO+3}], s{sT0} offen{pol} lds")
    a(f"s_add_u32 s{sOg}, s{sOg}, {32*1280}")
    a(f"s_setpc_b64 s[{sRET}:{sRET+1}]")
    a.label("L_nextO")
    a(f"s_add_u32 s{sOg}, s{sOg}, {128*1280}")
    wrap(sOg, sOend, 1024 * 1280)
    a(f"s_setpc_b64 s[{sRET}:{sRET+1}]")
    a.label("L_nextB")
    a(f"s_add_u32 s{sBg}, s{sBg}, 24576")
    wrap(sBg, sBend, 8 * 24576)
    a(f"s_setpc_b64 s[{sRET}:{sRET+1}]")
    a.label("L_issT")
    a(f"s_lshr_b32 s{sT0}, s2, 3")
    a(f"s_mul_i32 s{sT0}, s{sT0}, 40960")
    a(f"s_mul_i32 s{sT1}, s{sJ}, {1024*1280}")
    a(f"s_add_u32 s{sT0}, s{sT0}, s{sT1}")
    for p in range(5):
        a(f"buffer_load_dword v28, v23, s[{sWO}:{sWO+3}], s{sT0} offen{o.get('tpol','')}")
        a(f"s_add_u32 s{sT0}, s{sT0}, 8192")
    a(f"s_setpc_b64 s[{sRET}:{sRET+1}]")
    for nm, ld, cmp_, msk in (("G", f"buffer_load_dword v25, v26, s[{sDBG}:{sDBG+3}], s{sCL} offen sc1", f"v_cmp_ne_u32 vcc, s{sCNT}, v25", "15"),
                              ("F", f"buffer_load_dword v24, v27, s[{sWS}:{sWS+3}], s{sF1} offen sc1", "v_cmp_gt_u32 vcc, 1, v24", f"s{sT1}")):
        a.label(f"L_spin{nm}")
        a(f"s_mov_b32 s{sT0}, 0")
        a.label(f"L_spinl{nm}")
        a(ld)
        a(f"s_add_u32 s{sT0}, s{sT0}, 1")
        a(f"s_cmp_ge_u32 s{sT0}, {SPIN}")
        a(f"s_cbranch_scc1 L_spind{nm}")
        a("s_waitcnt vmcnt(0)")
        a(cmp_)
        a(f"s_and_b32 vcc_lo, vcc_lo, {msk}")
        a(f"s_cbranch_scc1 L_spinl{nm}")
        a.label(f"L_spind{nm}")
        a("s_waitcnt vmcnt(0)")
        a(f"s_setpc_b64 s[{sRET}:{sRET+1}]")
    a.label("L_awave")
    a(f"s_lshl_b32 s{sT0}, s{sWAVE}, 2")
    a(f"s_lshl_b32 s{sT3}, s{sHH}, 4")
    a(f"s_add_u32 s{sF1}, s{sF1}, s{sT3}")
    a(f"s_add_u32 s{sF1}, s{sF1}, s{sT0}")
    a(f"s_lshl_b32 s{sT3}, s{sJ}, 4")
    a(f"s_add_u32 s{sF2}, s{sF2}, s{sT3}")
    a(f"s_add_u32 s{sF2}, s{sF2}, s{sT0}")
    flag_store(a, sF1, 0)
    flag_store(a, sF2, 0)
    a(f"s_lshl_b32 s{sT0}, s{sBLK}, 8")
    a(f"s_add_u32 s{sT0}, s{sT0}, s{sT2}")
    a(f"s_mul_i32 s{sOoff}, s{sT0}, 24576")
    a(f"s_lshl_b32 s{sT0}, s{sWAVE}, 11")
    a(f"s_add_u32 s{sOoff}, s{sOoff}, s{sT0}")
    a(f"s_lshl_b32 s{sT0}, s{sCL}, 2")
    a(f"s_add_u32 s{sT0}, s{sT0}, s{sHH}")
    a(f"s_lshl_b32 s{sT0}, s{sT0}, 2")
    a(f"s_add_u32 s{sT0}, s{sT0}, s{sJ}")
    a(f"s_mul_i32 s{sPoff}, s{sT0}, 30720")
    a(f"s_mul_i32 s{sT0}, s{sWAVE}, 10240")
    a(f"s_add_u32 s{sPoff}, s{sPoff}, s{sT0}")
    a(f"s_add_u32 s{sPoff}, s{sPoff}, {WS_P}")
    a(f"s_mov_b32 s{sTH}, {THRESH}")
    a(f"s_mov_b32 s{sQS}, {QSCALE}")
    a(f"s_mov_b32 s{sQS+1}, {QSCALE}")
    for j in range(4): a(f"v_mov_b32 v{vT+j}, 0")
    a(f"v_lshlrev_b32 v{vL16}, 4, v0")
    a("v_and_b32 v64, 31, v0")
    a("v_lshrrev_b32 v65, 5, v0")
    for t in range(4): a(zero_mfma('v', vQA + 16 * t))
    for t in range(2): a(zero_mfma('a', aWF2 + 16 * t))
    a(zero_mfma('v', vXF))
    a("v_and_b32 v66, 15, v64")
    a("v_xor_b32 v66, v66, v65")
    a("v_lshlrev_b32 v66, 4, v66")
    a("v_lshl_add_u32 v66, v64, 8, v66")
    a(f"v_add_u32 v66, {KBASE}, v66")
    for ks in range(8): a(f"v_xor_b32 v{aK+ks}, {ks*32}, v66")
    a("v_bfe_u32 v66, v64, 1, 3")
    a("v_xor_b32 v66, v66, v65")
    a("v_lshlrev_b32 v66, 4, v66")
    a("v_lshl_add_u32 v66, v64, 7, v66")
    a(f"s_lshl_b32 s{sT0}, s{sWAVE}, 12")
    a(f"s_add_u32 s{sT0}, s{sT0}, {XBASE}")
    a(f"v_add_u32 v66, s{sT0}, v66")
    for ks in range(4): a(f"v_xor_b32 v{aX+ks}, {ks*32}, v66")
    a("v_bfe_u32 v67, v0, 2, 2")
    a("v_and_b32 v68, 1, v0")
    a("v_lshlrev_b32 v68, 4, v68")
    a("v_bfe_u32 v69, v0, 1, 1")
    a("v_lshl_add_u32 v68, v69, 3, v68")
    a("v_bfe_u32 v69, v0, 4, 1")
    a("v_lshl_add_u32 v68, v69, 5, v68")
    a("v_lshl_add_u32 v69, v65, 2, v67")
    a("v_lshl_add_u32 v69, v69, 8, v68")
    a("v_lshl_add_u32 v69, v67, 6, v69")
    a(f"v_add_u32 v69, {VBASE}, v69")
    for dt in range(4): a(f"v_xor_b32 v{aV+dt}, {dt*64}, v69")
    a("v_lshl_add_u32 v70, v65, 3, v67")
    a("v_lshl_add_u32 v69, v70, 8, v68")
    a("v_lshl_add_u32 v69, v67, 6, v69")
    a(f"v_add_u32 v69, {WBASE}, v69")
    for dt in range(4): a(f"v_xor_b32 v{aW+dt}, {dt*64}, v69")
    a("v_mul_u32_u24 v70, 320, v70")
    a(f"v_add_u32 v{aO}, v70, v68")
    a(f"s_lshl_b32 s{sT0}, s{sWAVE}, 11")
    a(f"s_add_u32 s{sT0}, s{sT0}, {XBASE}")
    a(f"v_add_u32 v{aB}, s{sT0}, v{vL16}")
    a(f"s_mov_b32 s{sCNT}, 0")
    a("s_waitcnt vmcnt(0)")
    a.label("L_qloop")
    for u in range(4):
        a("s_barrier")
        emit_tick(a, q_mfmas((u & 1) ^ 1), spread(q_reads(u, u & 1), 6))
        if u == 3:
            a(f"s_add_u32 s{sCNT}, s{sCNT}, 1")
            a(f"s_cmp_lt_u32 s{sCNT}, 5")
        a("s_waitcnt lgkmcnt(0)")
    a("s_cbranch_scc1 L_qloop")
    for m in q_mfmas(1): a(m)
    st.stamp(a, 1)
    a(f"s_cmp_lg_u32 s{sWAVE}, 0")
    a("s_cbranch_scc1 L_noann")
    a(f"s_lshl_b32 s{sT0}, s{sCL}, 4")
    a(f"s_lshl_b32 s{sT1}, s{sJ}, 2")
    a(f"s_add_u32 s{sT0}, s{sT0}, s{sT1}")
    a(f"s_add_u32 s{sT0}, s{sT0}, s{sHH}")
    a(f"v_mov_b32 v{vM0}, 1")
    a("s_mov_b64 exec, 1")
    a(f"buffer_store_byte v{vM0}, v{vT}, s[{sDBG}:{sDBG+3}], s{sT0} offen sc1")
    a("s_mov_b64 exec, -1")
    a.label("L_noann")
    a("s_nop 7")
    q_convert(a)
    for t in range(4): a(zero_mfma('v', vQA + 16 * t))
    gen_round(a, o, st, 'Q')
    st.stamp(a, 2)
    gen_round(a, o, st, 'O')
    gen_tail(a, o, st)
    if st.on:
        a("s_waitcnt vmcnt(0)")
        st.stamp(a, 10)
        a(f"s_cmp_lg_u32 s{sWAVE}, 0")
        a("s_cbranch_scc1 L_exit")
        st.flush(a, range(11))
    a("s_endpgm")
    rare(a, 0)
    rare(a, 1)
    rescaleO(a)
    a.label("L_exit")
    a("s_endpgm")

def generate(fname, **o):
    a = Asm()
    a(HEADER_COMMENT.rstrip("\n"))
    a(f"; @launch grid=(256,1,1) block=(256,1,1) lds={LDSSZ}")
    a('.amdgcn_target "amdgcn-amd-amdhsa--gfx950"')
    gen_kernel(a, o)
    kernel_desc(a, NAME + "_kernel", 512, 102, 256)
    t = a.text()
    n = hazard.check(t)
    assert n == 0, f"{n} hazards"
    open(fname, "w").write(t)

if __name__ == "__main__":
    generate("v2.s")
    generate("v2_st.s", stamps=1)
    for v in "ED":
        s, n = loader_schedule(v, {})
        print(v, [(t, x) for t, x in enumerate(s)])
```

```python
import sys, struct, math
from asmlib import *
import hazard
from gen2 import (MF, WS_O, WS_P, WS_F1, WS_F2, STAMP, QSCALE, THRESH, SPIN, srd, spread, merge, emit_tick, R,
                  sX, sK, sV, sW, sWS, sWO, sOUT, sDBG, sWAVE, sB, sHH, sJ, sBLK, sT0, sT1, sT2, sT3, sCL, sRET, sCNT, sF1, sF2,
                  sST, sLD, sPC, sEX, Stamps)

LDSSZ = 163840
sWg, sWend, sXg, sXend, sKg, sVg, sOg, sOend, sBg, sBend, sL = 50, 51, 52, 53, 54, 55, 56, 57, 58, 59, 60
sOoff, sTH, sQS, sPoff = 50, 51, 52, 54

aK, aV, aW, aX, aO, aB = 1, 9, 13, 17, 21, 22
vL16, vL0, vL1, vM0, vM1 = 23, 24, 25, 26, 27
vT = 28
vR = 30
vP, vNEG, vS = 32, 48, (64, 96)
vQA = 128
WF = (('v', 192), ('a', 96))
XF = (224, 232)
vOA = 128
OF = (('v', 208), ('a', 64))
vBF = 248
aPB = 128
AO, AQ, AKF, AVF = 0, (64, 96), 128, 192

class Layout:
    def __init__(self, o):
        self.NK, self.NV = o.get("NK", 2), o.get("NV", 3)
        self.PSZ = LDSSZ - 24576 - 16384 * (self.NK + self.NV)
        self.PB = 0
        self.VB = self.PSZ
        self.KB = self.VB + 16384 * self.NV
        self.XB = self.KB + 16384 * self.NK
        self.v15 = o.get("v15slot", 15 % self.NV)
        self.NW = self.PSZ // 8192
        self.NO = self.PSZ // 10240
        assert self.KB % 256 == 0

def softmax_ops(S, lo, hi):
    ops = []; pend = []
    for j in range(lo, hi, 2):
        ops.append((f"v_exp_f32 v{S+j}, v{S+j}", 8))
        ops.append((f"v_exp_f32 v{S+j+1}, v{S+j+1}", 8))
        ops += pend
        pend = [(f"v_add_f32 v{vL0}, v{vL0}, v{S+j}", 4), (f"v_add_f32 v{vL1}, v{vL1}, v{S+j+1}", 4),
                (f"v_cvt_pk_bf16_f32 v{vP+j//2}, v{S+j}, v{S+j+1}", 4)]
    if pend: ops.append(("s_nop 0", 4))
    return ops + pend

def max_ops(S):
    ops = []
    for sub, m in ((0, vM0), (1, vM1)):
        b = S + 16 * sub
        ops.append(f"v_max3_f32 v{m}, v{b}, v{b+1}, v{b+2}")
        for j in range(3, 15, 2): ops.append(f"v_max3_f32 v{m}, v{m}, v{b+j}, v{b+j+1}")
    ops.append(f"v_max3_f32 v{vM0}, v{vM0}, v{S+15}, v{S+31}")
    ops.append(f"v_max_f32 v{vM0}, v{vM0}, v{vM1}")
    return ops

def crosshalf_ops(r, t, op):
    return [f"v_mov_b32 v{t}, v{r}", "s_nop 1", f"v_permlane32_swap_b32 v{r}, v{t}", "s_nop 0", f"{op} v{r}, v{r}, v{t}"]

def init_ops(S):
    return max_ops(S) + crosshalf_ops(vM0, vT, "v_max_f32") + [f"v_sub_f32 v{vNEG+j}, 0, v{vM0}" for j in range(16)] \
        + [f"v_sub_f32 v{S+j}, v{S+j}, v{vM0}" for j in range(32)]

def lfin_ops():
    return [f"v_add_f32 v{vL0}, v{vL0}, v{vL1}"] + crosshalf_ops(vL0, vT, "v_add_f32") + [f"v_rcp_f32 v{vR}, v{vL0}", f"v_mov_b32 v{vL1}, 0", f"v_mov_b32 v{vL0}, 0"]

def k_reads(slot):
    return [f"ds_read_b128 {R('a', AKF+(sub*8+ks)*4, 4)}, v{aK+ks} offset:{slot*16384+sub*8192}" for sub in range(2) for ks in range(8)]
def v_reads(slot, dtmajor=False):
    idx = [(ks, dt) for dt in range(4) for ks in range(4)] if dtmajor else [(ks, dt) for ks in range(4) for dt in range(4)]
    return [f"ds_read_b64_tr_b16 {R('a', AVF+(ks*4+dt)*4+2*t, 2)}, v{aV+dt} offset:{slot*16384+ks*4096+t*2048}" for ks, dt in idx for t in range(2)]
def qk_mfmas(i):
    S = vS[i & 1]; q = AQ[i >> 3]; c0 = "0" if i % 8 == 0 else R('v', vNEG, 16)
    r = []
    for sub in range(2):
        for ks in range(8):
            d = R('v', S + 16 * sub, 16)
            r.append(f"{MF} {d}, {R('a', AKF+(sub*8+ks)*4, 4)}, {R('a', q+4*ks, 4)}, {d if ks else c0}")
    return r
def pv_mfmas(i, dtmajor=False):
    idx = [(ks, dt) for dt in range(4) for ks in range(4)] if dtmajor else [(ks, dt) for ks in range(4) for dt in range(4)]
    return [f"{MF} {R('a', AO+16*dt, 16)}, {R('a', AVF+(ks*4+dt)*4, 4)}, {R('v', vP+4*ks, 4)}, {'0' if (ks == 0 and i % 8 == 0) else R('a', AO+16*dt, 16)}" for ks, dt in idx]

def q_reads(L, c, buf):
    wk, wb = WF[buf]; xb = XF[buf]
    ws = c % L.NW; xs = (c >> 1) & 1
    xr = [f"ds_read_b128 {R('v', xb+4*ks, 4)}, v{aX+2*(c&1)+ks} offset:{xs*12288}" for ks in range(2)]
    def wr(ks): return [f"ds_read_b64_tr_b16 {R(wk, wb+(ks*4+dt)*4+2*t, 2)}, v{aW+dt} offset:{ws*8192+ks*4096+t*1024}" for dt in range(4) for t in range(2)]
    return [xr[0]] + wr(0) + [xr[1]] + wr(1)
def q_mfmas(c, buf):
    wk, wb = WF[buf]; xb = XF[buf]
    return [f"{MF} {R('v', vQA+16*dt, 16)}, {R(wk, wb+(ks*4+dt)*4, 4)}, {R('v', xb+4*ks, 4)}, {'0' if (c % 20 == 0 and ks == 0) else R('v', vQA+16*dt, 16)}"
            for ks in range(2) for dt in range(4)]
def o_wreads(slot, buf=0, ks_list=(0, 1)):
    k, b = OF[buf]
    base = slot * 10240
    areg = (aO, aK, aK + 1)[base // 61440]
    base %= 61440
    return [f"ds_read_b64_tr_b16 {R(k, b+(ks*5+ct)*4+2*t, 2)}, v{areg} offset:{base+ks*5120+t*1280+ct*64}" for ks in ks_list for ct in range(5) for t in range(2)]
def o_breads(c, dst=vBF):
    return [f"ds_read_b128 {R('v', dst+4*ks, 4)}, v{aB} offset:{(c&3)*6144+ks*1024}" for ks in range(2)]
def o_mfmas(c, buf=0, bk='v', bb=vBF):
    k, b = OF[buf]
    return [f"{MF} {R('v', vOA+16*ct, 16)}, {R(k, b+(ks*5+ct)*4, 4)}, {R(bk, bb+4*ks, 4)}, {'0' if (c == 0 and ks == 0) else R('v', vOA+16*ct, 16)}"
            for ks in range(2) for ct in range(5)]

def q_convert_ops(dstq, pk):
    ops = []
    for dt in range(4):
        b = vQA + 16 * dt
        if pk: ops += [f"v_pk_mul_f32 v[{b+2*m}:{b+2*m+1}], v[{b+2*m}:{b+2*m+1}], s[{sQS}:{sQS+1}]" for m in range(8)]
        else: ops += [f"v_mul_f32 v{b+j}, s{sQS}, v{b+j}" for j in range(16)]
        ops += [f"v_cvt_pk_bf16_f32 v{b+m}, v{b+2*m}, v{b+2*m+1}" for m in range(8)]
        ops += [f"v_accvgpr_write_b32 a{dstq+8*dt+m}, v{b+m}" for m in range(8)]
    return ops

def finalize_ops(dt, tmp, pkd, pk, lds):
    ops = [f"v_accvgpr_read_b32 v{tmp+j}, a{AO+16*dt+j}" for j in range(16)]
    if pk: ops += [f"v_pk_mul_f32 v[{tmp+2*m}:{tmp+2*m+1}], v[{tmp+2*m}:{tmp+2*m+1}], v[{vR}:{vR+1}] op_sel_hi:[1,0]" for m in range(8)]
    else: ops += [f"v_mul_f32 v{tmp+j}, v{tmp+j}, v{vR}" for j in range(16)]
    ops += [f"v_cvt_pk_bf16_f32 v{pkd+8*dt+m}, v{tmp+2*m}, v{tmp+2*m+1}" for m in range(8)]
    ops.append(f"s_add_u32 s{sT0}, s{sOoff}, {dt*6144}")
    for u in range(2):
        ops.append(f"buffer_store_dwordx4 {R('v', pkd+8*dt+4*u, 4)}, v{vL16}, s[{sWS}:{sWS+3}], s{sT0} offen offset:{u*1024} sc1")
        if lds: ops.append(f"ds_write_b128 v{aB}, {R('v', pkd+8*dt+4*u, 4)} offset:{dt*6144+u*1024}")
    return ops

def flag_store(a, soff, val):
    a(f"v_mov_b32 v{vT}, {val}")
    a(f"v_mov_b32 v{vT+1}, 0")
    a("s_mov_b64 exec, 1")
    a(f"buffer_store_dword v{vT}, v{vT+1}, s[{sWS}:{sWS+3}], s{soff} offen sc1")
    a("s_mov_b64 exec, -1")

def wave_poll(a, sline, val, tag):
    a(f"s_and_b32 s{sT0}, s{sline}, 0xffffffcf")
    a(f"s_mov_b32 s{sT1}, 0")
    a("s_mov_b64 exec, 15")
    a.label(f"L_wp{tag}")
    a(f"buffer_load_dword v{vM0}, v{vL16}, s[{sWS}:{sWS+3}], s{sT0} offen sc1")
    a(f"s_add_u32 s{sT1}, s{sT1}, 1")
    a(f"s_cmp_ge_u32 s{sT1}, {SPIN}")
    a(f"s_cbranch_scc1 L_wpd{tag}")
    a("s_waitcnt vmcnt(0)")
    a(f"v_cmp_gt_u32 vcc, {val}, v{vM0}")
    a(f"s_cbranch_vccnz L_wp{tag}")
    a.label(f"L_wpd{tag}")
    a("s_mov_b64 exec, -1")

def rare_check(a, nxt):
    a(f"v_cmp_lt_f32 vcc, s{sTH}, v{vM0}")
    lab = a.newlabel("L_norare")
    a(f"s_cbranch_vccz {lab}")
    a(f"s_call_b64 s[{sRET}:{sRET+1}], L_rare{nxt}")
    a.label(lab)

def rare(a, buf):
    S = vS[buf]
    a.label(f"L_rare{buf}")
    for t in crosshalf_ops(vM0, vT, "v_max_f32"): a(t)
    a(f"v_max_f32 v{vM0}, 0, v{vM0}")
    a(f"v_sub_f32 v{vM1}, 0, v{vM0}")
    a(f"v_exp_f32 v{vM1}, v{vM1}")
    a("s_nop 7")
    for j in range(32): a(f"v_sub_f32 v{S+j}, v{S+j}, v{vM0}")
    a("s_branch L_rescaleO")

def rescaleO(a):
    a.label("L_rescaleO")
    for j in range(16): a(f"v_sub_f32 v{vNEG+j}, v{vNEG+j}, v{vM0}")
    a(f"v_mul_f32 v{vL0}, v{vL0}, v{vM1}")
    a(f"v_mul_f32 v{vL1}, v{vL1}, v{vM1}")
    for j in range(0, 64, 2):
        for k in range(2): a(f"v_accvgpr_read_b32 v{vT+k}, a{AO+j+k}")
        for k in range(2): a(f"v_mul_f32 v{vT+k}, v{vT+k}, v{vM1}")
        for k in range(2): a(f"v_accvgpr_write_b32 a{AO+j+k}, v{vT+k}")
    a("s_nop 1")
    a(f"s_setpc_b64 s[{sRET}:{sRET+1}]")

class Plan:
    def __init__(self, o):
        self.o = o
        L = self.L = Layout(o)
        self.HT = 20
        M0 = self.M0 = self.HT
        qpat = o.get("qpat", [0, 1, 1, 2, 1, 2, 1, 2, 1, 2, 1, 2, 1, 2, 1])
        assert sum(qpat) == 20 and len(qpat) <= 15
        self.qch = {}; c = 20
        for n, k in enumerate(qpat):
            self.qch[n] = list(range(c, c + k)); c += k
        ol = o.get("olist", [20, 21, 22, 23, 25, 26, 27, 28, 29, 30, 31])
        self.och = {n: c for c, n in enumerate(ol)}
        self.NOM = len(ol)
        assert self.NOM <= 12
        self.nV15 = 32
        self.tV15 = M0 + 32
        self.Tc = self.tV15 + (20 - self.NOM) + 1
        self.NT = self.Tc + 1
        it = self.items = {}
        def add(key, need, last, lo, sz, nl): it[key] = dict(need=need, last=last, lo=lo, hi=lo + sz, nl=nl)
        wt = {c: c for c in range(20)}
        for n, cs in self.qch.items():
            for c in cs: wt[c] = M0 + n
        for c in range(40): add(("W", c), wt[c], wt[c], L.PB + (c % L.NW) * 8192, 8192, 8)
        for m in range(20): add(("X", m), wt[2*m], wt[2*m+1], L.XB + (m & 1) * 12288, 12288, 12)
        for i in range(16):
            t = M0 + max(0, 2 * i - 1); add(("K", i), t, t, L.KB + (i % L.NK) * 16384, 16384, 16)
            t = M0 + 2 * i + 2; add(("V", i), t, t, L.VB + (i % L.NV if i < 15 else L.v15) * 16384, 16384, 16)
        self.nfin = 18
        ot = {c: M0 + n for n, c in self.och.items()}
        for c in range(12):
            t = last = ot.get(c, self.tV15 + c - self.NOM)
            add(("B", c), t if c >= 4 else M0 + self.nfin, last, L.XB + (c & 3) * 6144, 6144, 6)
        self.oslot = {}
        for c in range(self.NOM):
            self.oslot[c] = c % L.NO
            add(("O", c), ot[c], ot[c], L.PB + self.oslot[c] * 10240, 10240, 10)
        nslots = (LDSSZ - 24576) // 10240
        def free_at(lo, hi):
            return max([v["last"] + 2 for v in it.values() if v["lo"] < hi and lo < v["hi"]] + [0])
        for c in range(self.NOM, 32):
            s = min(range(nslots), key=lambda s: (free_at(s * 10240, s * 10240 + 10240), s))
            f = free_at(s * 10240, s * 10240 + 10240)
            if c <= 20: need = last = self.tV15 + c - self.NOM
            else: need, last = self.Tc, 999
            assert f <= need, (c, f, need)
            self.oslot[c] = s
            add(("O", c), need, last, s * 10240, 10240, 10)
        for k, v in it.items():
            v["free"] = max([w["last"] + 2 for kk, w in it.items() if kk != k and w["lo"] < v["hi"] and v["lo"] < w["hi"] and w["last"] < v["need"]] + [0])
            for kk, w in it.items():
                if kk != k and w["lo"] < v["hi"] and v["lo"] < w["hi"]:
                    assert w["last"] < v["need"] or v["last"] < w["need"], (k, kk)
        assert it[("B", 0)]["free"] <= M0 + self.nfin + 1 and it[("B", 3)]["free"] <= M0 + self.nfin + 1

    def schedule(self, variant):
        o, it, M0 = self.o, self.items, self.M0
        pos = {}
        DW = o.get("DW", 5)
        for c in range(20): pos[("W", c)] = max(it[("W", c)]["free"], c - DW + 1, 0)
        for m in range(10): pos[("X", m)] = it[("X", m)]["free"]
        pre = o.get("pre" + variant, o.get("pre", {("K", 0): 17, ("K", 1): 17, ("V", 0): 19}))
        pos.update(pre)
        parK, parH = o.get("parK", 1), o.get("parH", o.get("parK", 1))
        quiet = set(M0 + q for q in o.get("quiet", []))
        DKV, DH = o.get("DKV", 3), o.get("DH", 2)
        def place(key, d, prev):
            v = it[key]
            par = parK if key[0] in "KV" else parH
            ok = lambda s: (s - M0 - par) % 2 == 0 and s not in quiet
            lo = max(v["free"], prev, M0 - 2)
            if o.get("clump", 1):
                cand = [s for s in range(lo, v["need"]) if ok(s)]
                good = [s for s in cand if s <= v["need"] - d + 1]
                s = good[-1] if good else (cand[0] if cand else lo)
            else:
                s = max(lo, v["need"] - d + 1)
            assert s <= v["need"], (key, s, v)
            pos[key] = s; return s
        for typ, rng, d in (("K", range(16), DKV), ("V", range(16), DKV), ("W", range(20, 40), DH), ("X", range(10, 20), DH),
                            ("B", range(4, 12), 2), ("O", range(self.NOM), DH)):
            prev = 0
            for i in rng:
                if (typ, i) in pos: prev = pos[(typ, i)]; continue
                if (typ, i) == ("B", 4) and not o.get("natf", 0):
                    prev = pos[(typ, i)] = it[(typ, i)]["need"] - 1; continue
                if typ == "X" and o.get("xcache", 1):
                    prev = pos[(typ, i)] = max(it[(typ, i)]["free"], prev); continue
                if typ in "KV" and i < o.get("asap", 0): d = 99
                elif typ in "KV": d = DKV
                prev = place((typ, i), d, prev)
        pos[("V", 15)] = max(it[("V", 15)]["free"], pos[("V", 14)], pos[("K", 15)] + o.get("v15gap", 1))
        prev = pos[("O", self.NOM - 1)]
        pace = o.get("opace", 3); s = max(prev, pos[("V", 15)] + o.get("olate", 0)); k = 0
        for c in range(self.NOM, 32):
            v = it[("O", c)]
            if k >= pace and s < v["need"] - 1: s += 1; k = 0
            if v["free"] > s: s = v["free"]; k = 0
            assert s <= v["need"], (c, s, v)
            pos[("O", c)] = s; k += 1
        sched = [[] for _ in range(self.NT + 1)]
        hitfirst = o.get("hitfirst", 1)
        def key(x):
            miss = x[0] in "KV"
            late = x[0] == "O" and x[1] >= self.NOM
            if pos[x] < M0 - 2: return (0 if (miss and x in pre and o.get("prefirst", 0)) else 1, it[x]["need"], x[0] != "X", x[1])
            return (2 if late else (int(miss) if hitfirst else int(not miss)), it[x]["need"], x[0] != "X", x[1])
        for x in sorted(pos, key=key): sched[pos[x]].append(x)
        need = {k: v["need"] for k, v in it.items()}
        if o.get("xcache", 1):
            for m in range(10): sched[it[("X", m)]["need"] + 1].append(("XR", m))
        g = M0 + 12
        sched[g].insert(0, ("G", 0)); need[("G", 0)] = g + 2
        sched[g + 3].insert(0, ("CG", 0))
        for p in range(3):
            s = pos[("B", 4 + 4 * p)] if p < 2 else M0 + 30
            fs = s - (1 if (p == 0 and not o.get("natf", 0)) else 2)
            if p == 2: fs = s - o.get("f2d", 2)
            sched[fs].insert(0, ("F", p)); need[("F", p)] = s - 1
            if p < 2:
                if p == 0 and not o.get("natf", 0):
                    bs = [x for x in sched[s] if x[0] == "B"]
                    sched[s] = [x for x in sched[s] if x[0] != "B"] + bs
                sched[s].insert(sched[s].index(("B", 4 + 4 * p)), ("CF", p))
            else:
                sched[s].append(("CF", p))
        for k, tt in enumerate(o.get("touch" + variant, o.get("touch", [M0 + 3, M0 + 5, M0 + 7, M0 + 9, M0 + 11]))):
            sched[tt].append(("T", k)); need[("T", k)] = 999
        for k, tt in enumerate(o.get("touchq" + variant, o.get("touchq", []))):
            sched[tt].append(("U", k)); need[("U", k)] = 999
        return sched, need

def xreg(m, p):
    r = 32 + m * 48 + p * 4
    return R('v', r, 4) if r < 256 else R('a', r - 256, 4)

def emit_loader_schedule(a, P, variant, st, o):
    sched, need = P.schedule(variant)
    it = P.items
    issued = []; total = 0
    vF, vG, vB = 24, 25, 22
    xc = o.get("xcache", 1)
    for t in range(P.NT):
        ldsop = False
        for x in sched[t]:
            ty, c = x
            if ty == "CG":
                lab = a.newlabel("L_cg")
                a(f"v_cmp_ne_u32 vcc, s{sCNT}, v{vG}")
                a("s_and_b32 vcc_lo, vcc_lo, 15")
                a(f"s_cbranch_scc0 {lab}")
                a(f"s_call_b64 s[{sRET}:{sRET+1}], L_spinG")
                a.label(lab); continue
            if ty == "CF":
                lab = a.newlabel("L_cf")
                a(f"s_add_u32 s{sT1}, s{sHH}, {c+1}")
                a(f"s_and_b32 s{sT1}, s{sT1}, 3")
                a(f"s_lshl_b32 s{sT1}, s{sT1}, 2")
                a(f"s_lshl_b32 s{sT1}, 7, s{sT1}")
                a(f"v_cmp_gt_u32 vcc, 1, v{vF}")
                a(f"s_and_b32 vcc_lo, vcc_lo, s{sT1}")
                a(f"s_cbranch_scc0 {lab}")
                a(f"s_call_b64 s[{sRET}:{sRET+1}], L_spinF")
                a.label(lab); continue
            if ty == "XR":
                for p in range(12): a(f"ds_read_b128 {xreg(c, p)}, v29 offset:{(c&1)*12288+p*1024}")
                ldsop = True; continue
            if ty == "X" and c >= 10 and xc:
                for p in range(12): a(f"ds_write_b128 v29, {xreg(c-10, p)} offset:{(c&1)*12288+p*1024}")
                ldsop = True; continue
            if ty == "G":
                a(f"buffer_load_dword v{vG}, v26, s[{sDBG}:{sDBG+3}], s{sCL} offen sc1"); n = 1
            elif ty == "F":
                a(f"buffer_load_dword v{vF}, v27, s[{sWS}:{sWS+3}], s{sF1} offen sc1"); n = 1
            elif ty == "T":
                a(f"buffer_load_dword v28, v23, s[{sWO}:{sWO+3}], s{sT3} offen{o.get('tpol','')}")
                a(f"s_add_u32 s{sT3}, s{sT3}, 8192"); n = 1
            elif ty == "U":
                if c == 2: a("s_mov_b32 exec_hi, 0")
                a(f"buffer_load_dword v28, v2, s[{sW}:{sW+3}], s{sT2} offen{o.get('upol','')}")
                if c == 2: a("s_mov_b32 exec_hi, -1")
                a(f"s_add_u32 s{sT2}, s{sT2}, {8*8192}"); n = 1
            else:
                if ty == "W" and c == 20:
                    a(f"s_add_u32 s{sWg}, s{sWg}, 256")
                    a(f"s_add_u32 s{sWend}, s{sWend}, 256")
                if ty == "O" and c == 16:
                    a(f"s_add_u32 s{sOg}, s{sOg}, {128*1280}")
                    a(f"s_add_u32 s{sOend}, s{sOend}, {128*1280}")
                a(f"s_mov_b32 m0, {it[x]['lo']}")
                a(f"s_call_b64 s[{sRET}:{sRET+1}], L_iss{ty}")
                if ty in "OB" and c % 4 == 3: a(f"s_call_b64 s[{sRET}:{sRET+1}], L_next{ty}")
                n = it[x]["nl"]
            total += n; issued.append((x, total))
        if t == 0: a(f"s_call_b64 s[{sRET}:{sRET+1}], L_late_setup")
        req = max(c for x, c in issued if need[x] <= t)
        if st.on and t > 0:
            a("s_waitcnt lgkmcnt(0)")
            a(f"v_writelane_b32 v30, s70, {min(63, t-1)}")
            if o.get("trace2"): a("s_memrealtime s[72:73]")
        a(f"s_waitcnt vmcnt({min(63, total - req)})" + (" lgkmcnt(0)" if ldsop else ""))
        if st.on and t > 0 and o.get("trace2"):
            a("s_memrealtime s[74:75]")
            a("s_waitcnt lgkmcnt(0)")
            a(f"v_writelane_b32 v31, s72, {min(63, t)}")
            a(f"v_writelane_b32 v3, s74, {min(63, t)}")
        a("s_barrier")
        if st.on: a("s_memrealtime s[70:71]")
    if st.on:
        a("s_waitcnt lgkmcnt(0)")
        a(f"v_writelane_b32 v30, s70, {min(63, P.NT-1)}")

def pad(a, o, point):
    p = o.get("pad")
    if not p or p[0] != point: return
    a("s_waitcnt lgkmcnt(0)")
    a(f"s_add_u32 s86, s84, {p[1]}")
    a.label("L_pad")
    a("s_memrealtime s[82:83]")
    a("s_waitcnt lgkmcnt(0)")
    a("s_sub_u32 s87, s82, s86")
    a("s_cmp_lt_i32 s87, 0")
    a("s_cbranch_scc1 L_pad")

def gen_middle(a, P, o, st):
    L = P.L
    NA = o.get("NA", 24)
    def projparts(n):
        rd, mf = [], []
        for k, c in enumerate(P.qch.get(n, [])):
            rd += q_reads(L, c, k); mf += q_mfmas(c, k)
        if n in P.och:
            c = P.och[n]; b = o_breads(c)
            rd += [b[0]] + o_wreads(P.oslot[c], 0, (0,)) + [b[1]] + o_wreads(P.oslot[c], 0, (1,))
            mf += o_mfmas(c)
        return rd, mf
    pr, pm = projparts(0)
    assert not pm
    a("s_barrier")
    emit_tick(a, q_mfmas(19, 1), spread(k_reads(0), 6))
    st.stamp(a, 1)
    pad(a, o, 1)
    a(f"s_cmp_lg_u32 s{sWAVE}, 0")
    a("s_cbranch_scc1 L_noann")
    a(f"s_lshl_b32 s{sT0}, s{sCL}, 4")
    a(f"s_lshl_b32 s{sT1}, s{sJ}, 2")
    a(f"s_add_u32 s{sT0}, s{sT0}, s{sT1}")
    a(f"s_add_u32 s{sT0}, s{sT0}, s{sHH}")
    a(f"v_mov_b32 v{vM0}, 1")
    a("s_mov_b64 exec, 1")
    a(f"buffer_store_byte v{vM0}, v{vL0}, s[{sDBG}:{sDBG+3}], s{sT0} offen sc1")
    a("s_mov_b64 exec, -1")
    a.label("L_noann")
    a("s_nop 7")
    cv = q_convert_ops(AQ[0], True)
    qk = qk_mfmas(0)
    a("s_waitcnt lgkmcnt(0)")
    for t in cv[:24]: a(t)
    for dt in range(4):
        ms = [qk[2*dt], qk[8+2*dt], qk[2*dt+1], qk[8+2*dt+1]]
        a("s_nop 1")
        emit_tick(a, ms, spread(cv[24*(dt+1):24*(dt+2)], 4) if dt < 3 else [])
    pr, pm = projparts(1)
    a("s_barrier")
    val = init_ops(vS[0])
    if pm: emit_tick(a, pm, spread(val[20:], len(pm)), pre=pr + k_reads(1 % L.NK) + val[:20])
    else: emit_tick(a, [], [], pre=k_reads(1 % L.NK) + val)
    a("s_waitcnt lgkmcnt(0)")
    for i in range(15):
        cur, nxt = i & 1, (i + 1) & 1
        n = 2 * i + 2
        pr, pm = projparts(n)
        a("s_barrier")
        if i == 8: st.stamp(a, 2)
        ng = 16 + len(pm)
        fs = [spread(pr + v_reads(i % L.NV), ng - 2)]
        sm = softmax_ops(vS[cur], 0, NA)
        if i == 8:
            assert not pm
            fin = sum((finalize_ops(dt, 240, 208, False, True) for dt in range(4)), [])
            fs.append(spread(fin, ng - 3, start=0)); fs.append(spread(sm, ng))
        else:
            fs.append(spread(sm, ng))
        emit_tick(a, qk_mfmas(i + 1) + pm, merge(*fs))
        if i == 8: a(f"s_add_u32 s{sOoff}, s{sOoff}, 24576")
        if n == o.get("nflag1", 19):
            a("s_waitcnt vmcnt(0)")
            flag_store(a, sF1, 1)
        a("s_waitcnt lgkmcnt(0)")
        n = 2 * i + 3
        pr, pm = projparts(n)
        a("s_barrier")
        if i == 14:
            a(f"s_add_u32 s{sT0}, s{sHH}, 3")
            a(f"s_and_b32 s{sT0}, s{sT0}, 3")
            a(f"s_sub_u32 s{sT0}, s{sT0}, s{sHH}")
            a(f"s_mul_i32 s{sT0}, s{sT0}, 49152")
            a(f"s_add_u32 s{sT0}, s{sT0}, s{sOoff}")
            a(f"s_sub_u32 s{sT0}, s{sT0}, 24576")
            for cc in range(4):
                for ks in range(2):
                    a(f"buffer_load_dwordx4 {R('a', aPB+(cc*2+ks)*4, 4)}, v{vL16}, s[{sWS}:{sWS+3}], s{sT0} offen offset:{ks*1024} sc1")
                if cc < 3: a(f"s_add_u32 s{sT0}, s{sT0}, 6144")
        ng = 16 + len(pm)
        kr = k_reads((i + 2) % L.NK) if i < 14 else []
        fs = [spread(pr + kr, ng - 2 if kr else 12)] if (pr or kr) else []
        fs.append(spread(softmax_ops(vS[cur], NA, 32), 10))
        if i == 6:
            assert not pm
            fs.append(spread(q_convert_ops(AQ[1], False), ng, start=1)); fs.append(spread(max_ops(vS[nxt]), ng, start=10))
        elif i == 7:
            io = init_ops(vS[nxt])
            fs.append(spread(io[:16], 10, start=3)); fs.append(spread(io[16:] + lfin_ops(), ng, start=10))
        elif i == 14:
            fs.append(spread(max_ops(vS[nxt]), 16, start=9))
        else:
            fs.append(spread(max_ops(vS[nxt]), ng, start=10))
        if i == 14:
            emit_tick(a, pv_mfmas(i), merge(*fs))
            rare_check(a, nxt)
            sm = softmax_ops(vS[nxt], 0, 32) + lfin_ops()[:-2]
            a("s_waitcnt lgkmcnt(0)")
            if pm: emit_tick(a, pm, spread(sm, len(pm)))
            else:
                for x in sm: a(x if isinstance(x, str) else x[0])
        else:
            emit_tick(a, pv_mfmas(i) + pm, merge(*fs))
            if i != 7: rare_check(a, nxt)
        if n == o.get("nflag1", 19):
            a("s_waitcnt vmcnt(0)")
            flag_store(a, sF1, 1)
        a("s_waitcnt lgkmcnt(0)")

def gen_tail(a, P, o, st):
    L = P.L
    c0 = P.NOM
    vPK = 96
    BF = (vBF, 32)
    a(f"v_add_u32 v{aK}, 61440, v{aO}")
    a(f"v_add_u32 v{aK+1}, 122880, v{aO}")
    a("s_barrier")
    st.stamp(a, 3)
    pad(a, o, 3)
    vr_ = v_reads(L.v15, True)
    def creads(c):
        buf = (c - c0) & 1
        r = o_wreads(P.oslot[c], buf)
        if c < 12: r = o_breads(c, BF[buf]) + r
        return r
    fin = [finalize_ops(dt, 64 + 16 * (dt & 1), vPK, True, False) for dt in range(4)]
    fl = spread(vr_[10:] + creads(c0), 12)
    fl = merge(fl, spread(fin[0], 12, start=8), spread(fin[1], 16, start=12))
    emit_tick(a, pv_mfmas(15, True), fl, pre=vr_[:10])
    for t in fin[2]: a(t)
    for t in fin[3]: a(t)
    st.stamp(a, 4)
    a("s_waitcnt lgkmcnt(0)")
    def chunk(c, nextreads, extra=()):
        buf = (c - c0) & 1
        if c < 12: m = o_mfmas(c, buf, 'v', BF[buf])
        elif c < 16: m = o_mfmas(c, buf, 'a', aPB + 8 * (c - 12))
        elif c < 20: m = o_mfmas(c, buf, 'v', vPK + 8 * (c - 16))
        else: m = o_mfmas(c, buf, 'a', aPB + 8 * (c - 20))
        fl = spread(nextreads, 9) if nextreads else [[]]
        if extra: fl = merge(fl, spread(list(extra), 10))
        emit_tick(a, m, fl)
        a("s_waitcnt lgkmcnt(0)")
    vPA, vOUT = 3, 6
    ex = []
    for i in range(3):
        ex += [f"v_add_u32 v{vM0}, {64*i}, v0",
               f"v_lshrrev_b32 v{vM1}, 3, v{vM0}",
               f"v_and_b32 v{vM0}, 7, v{vM0}",
               f"v_lshlrev_b32 v{vPA+i}, 9, v{vM1}",
               f"v_lshl_add_u32 v{vPA+i}, v{vM0}, 4, v{vPA+i}",
               f"v_mul_u32_u24 v{vOUT+i}, 2560, v{vM0}",
               f"v_lshl_add_u32 v{vOUT+i}, v{vM1}, 4, v{vOUT+i}"]
    fat = min(19, c0 + o.get("flagafter", 3) - 1)
    for c in range(c0, 20):
        k = c - c0
        a("s_barrier")
        if c == 12 and c <= fat: a("s_waitcnt vmcnt(8)")
        chunk(c, creads(c + 1), ex[7 * k:7 * k + 7] if k < 3 else ())
        if c == fat:
            a("s_waitcnt vmcnt(0)")
            flag_store(a, sF1, 2)
            st.stamp(a, 5)
    a(f"s_lshl_b32 s{sT2}, s{sHH}, 1")
    a(f"s_mul_i32 s{sT2}, s{sT2}, 24576")
    a(f"s_sub_u32 s{sT2}, s{sOoff}, s{sT2}")
    wave_poll(a, sF1, 2, "1")
    st.stamp(a, 6)
    for p in range(3):
        a(f"s_add_u32 s{sT0}, s{sHH}, {p+1}")
        a(f"s_and_b32 s{sT0}, s{sT0}, 3")
        a(f"s_mul_i32 s{sT0}, s{sT0}, 49152")
        a(f"s_add_u32 s{sT0}, s{sT0}, s{sT2}")
        for cc in range(4):
            for ks in range(2):
                a(f"buffer_load_dwordx4 {R('a', aPB+(p*8+cc*2+ks)*4, 4)}, v{vL16}, s[{sWS}:{sWS+3}], s{sT0} offen offset:{ks*1024} sc1")
            if cc < 3: a(f"s_add_u32 s{sT0}, s{sT0}, 6144")
    a("s_barrier")
    for c in range(20, 32):
        a(f"s_waitcnt vmcnt({22 - 2 * (c - 20)})")
        chunk(c, creads(c + 1) if c < 31 else [])
    st.stamp(a, 7)
    a("s_nop 4")
    a(f"s_add_u32 s{sT0}, s{sPoff}, 4096")
    a(f"s_add_u32 s{sT1}, s{sPoff}, 8192")
    for ct in range(5):
        b = vOA + 16 * ct
        for m in range(8): a(f"v_cvt_pk_bf16_f32 v{64+8*ct+m}, v{b+2*m}, v{b+2*m+1}")
        for u in range(2):
            f = 2 * ct + u
            a(f"buffer_store_dwordx4 {R('v', 64+4*f, 4)}, v{vL16}, s[{sWS}:{sWS+3}], s{(sPoff, sT0, sT1)[f>>2]} offen offset:{(f&3)*1024} sc1")
    a(f"s_mul_i32 s{sT2}, s{sJ}, {30720-128}")
    a(f"s_sub_u32 s{sT2}, s{sPoff}, s{sT2}")
    a(f"s_mul_i32 s{sT3}, s{sB}, 96")
    a(f"s_lshl_b32 s{sT0}, s{sWAVE}, 5")
    a(f"s_add_u32 s{sT3}, s{sT3}, s{sT0}")
    a(f"s_lshl_b32 s{sT0}, s{sJ}, 3")
    a(f"s_add_u32 s{sT3}, s{sT3}, s{sT0}")
    a(f"s_mul_i32 s{sT3}, s{sT3}, 2560")
    a(f"s_mul_i32 s{sT0}, s{sBLK}, 1280")
    a(f"s_add_u32 s{sT3}, s{sT3}, s{sT0}")
    a(f"s_mul_i32 s{sT0}, s{sHH}, 320")
    a(f"s_add_u32 s{sT3}, s{sT3}, s{sT0}")
    a("s_waitcnt vmcnt(0)")
    flag_store(a, sF2, 1)
    st.stamp(a, 8)
    wave_poll(a, sF2, 1, "2")
    st.stamp(a, 9)
    for i in range(3):
        if i == 2: a("s_mov_b32 exec_hi, 0")
        for j in range(4):
            a(f"s_add_u32 s{sT0}, s{sT2}, {j*30720}")
            a(f"buffer_load_dwordx4 {R('v', 128+16*i+4*j, 4)}, v{vPA+i}, s[{sWS}:{sWS+3}], s{sT0} offen sc1")
    a("s_mov_b64 exec, -1")
    a(f"s_mov_b32 s{sT1}, 0xffff0000")
    for i in range(3):
        a(f"s_waitcnt vmcnt({8 - 3 * i})")
        if i == 2: a("s_mov_b32 exec_hi, 0")
        for d in range(4):
            for j in range(4):
                a(f"v_lshlrev_b32 v{64+j}, 16, v{128+16*i+4*j+d}")
                a(f"v_and_b32 v{68+j}, s{sT1}, v{128+16*i+4*j+d}")
            a("v_add_f32 v64, v64, v65"); a("v_add_f32 v66, v66, v67"); a("v_add_f32 v68, v68, v69"); a("v_add_f32 v70, v70, v71")
            a("v_add_f32 v64, v64, v66"); a("v_add_f32 v68, v68, v70")
            a(f"v_cvt_pk_bf16_f32 v{72+4*i+d}, v64, v68")
        a(f"buffer_store_dwordx4 {R('v', 72+4*i, 4)}, v{vOUT+i}, s[{sOUT}:{sOUT+3}], s{sT3} offen{o.get('outpol','')}")
    a("s_mov_b64 exec, -1")

def gen_kernel(a, o):
    st = Stamps(o.get("stamps", 0))
    P = Plan(o); L = P.L
    k = NAME + "_kernel"
    kernel_begin(a, k)
    a("s_cmp_ge_u32 s2, 256")
    a("s_cbranch_scc1 L_exit")
    st.stamp(a, 0)
    if o.get("pad"): a("s_memrealtime s[84:85]")
    a(f"s_and_b32 s{sT0}, s2, 7")
    a(f"s_lshr_b32 s{sBLK}, s{sT0}, 2")
    a(f"s_mul_i32 s{sT1}, s{sBLK}, 40")
    a(f"s_add_u32 s{sEX}, s0, s{sT1}")
    a(f"s_addc_u32 s{sEX+1}, s1, 0")
    a(f"s_load_dwordx8 s[{sLD}:{sLD+7}], s[{sEX}:{sEX+1}], 0")
    a(f"s_load_dwordx2 s[{sWO}:{sWO+1}], s[{sEX}:{sEX+1}], 32")
    a(f"s_load_dwordx2 s[{sOUT}:{sOUT+1}], s[0:1], 80")
    a(f"s_load_dwordx2 s[{sDBG}:{sDBG+1}], s[0:1], 88")
    a(f"s_load_dwordx2 s[{sWS}:{sWS+1}], s[0:1], 96")
    a(f"s_getpc_b64 s[{sPC}:{sPC+1}]")
    a("L_pc:")
    a(f"s_and_b32 s{sJ}, s{sT0}, 3")
    a(f"s_lshr_b32 s{sT0}, s2, 3")
    a(f"s_and_b32 s{sB}, s{sT0}, 7")
    a(f"s_lshr_b32 s{sHH}, s{sT0}, 3")
    a(f"s_mov_b32 s{sT0}, L_exit-L_pc")
    a("v_lshrrev_b32 v1, 6, v0")
    a("v_lshlrev_b32 v2, 7, v0")
    a(f"v_readfirstlane_b32 s{sWAVE}, v1")
    a("v_and_b32 v0, 63, v0")
    a(f"s_cmp_eq_u32 s{sWAVE}, 3")
    a("s_cbranch_scc1 L_nopf3")
    for rep in range(3):
        if rep: a("v_add_u32 v2, 24576, v2")
        a(f"v_cmp_gt_u32 vcc, s{sT0}, v2")
        a(f"s_and_saveexec_b64 s[{sRET}:{sRET+1}], vcc")
        a(f"s_cbranch_execz L_nopf{rep}")
        a(f"global_load_dword v47, v2, s[{sPC}:{sPC+1}]")
        a(f"L_nopf{rep}:")
        a(f"s_mov_b64 exec, s[{sRET}:{sRET+1}]")
    a("L_nopf3:")
    a(f"s_lshl_b32 s{sCL}, s{sBLK}, 3")
    a(f"s_add_u32 s{sCL}, s{sCL}, s{sB}")
    a(f"s_lshl_b32 s{sT1}, s{sJ}, 3")
    a(f"s_lshl_b32 s{sT0}, s{sHH}, 1")
    a(f"s_add_u32 s{sT1}, s{sT1}, s{sT0}")
    a(f"s_lshl_b32 s{sT2}, s{sB}, 5")
    a(f"s_add_u32 s{sT2}, s{sT2}, s{sT1}")
    a(f"s_lshl_b32 s{sT0}, s{sCL}, 2")
    a(f"s_add_u32 s{sF1}, s{sT0}, s{sJ}")
    a(f"s_lshl_b32 s{sF1}, s{sF1}, 7")
    a(f"s_add_u32 s{sF1}, s{sF1}, {WS_F1}")
    a(f"s_add_u32 s{sF2}, s{sT0}, s{sHH}")
    a(f"s_lshl_b32 s{sF2}, s{sF2}, 7")
    a(f"s_add_u32 s{sF2}, s{sF2}, {WS_F2}")
    a(f"s_cmp_lg_u32 s{sWAVE}, 3")
    a("s_cbranch_scc1 L_awave")
    vK, vV, vW, vX, vO, vB = 4, 8, 9, 13, 17, 22
    a("v_lshrrev_b32 v1, 3, v0")
    a("v_and_b32 v2, 7, v0")
    for p in range(2):
        a(f"v_add_u32 v3, {8*p}, v1")
        a("v_bfe_u32 v23, v3, 1, 3")
        a("v_xor_b32 v23, v23, v2")
        a("v_lshlrev_b32 v23, 4, v23")
        a("v_mul_u32_u24 v3, 1280, v3")
        a("v_add_u32 v23, v23, v3")
        a(f"v_subrev_u32 v{vX+p}, {p*1024}, v23")
        a(f"v_add_u32 v{vX+p+2}, {16*1280-2048}, v{vX+p}")
    a("v_lshrrev_b32 v1, 4, v0")
    a("v_and_b32 v2, 15, v0")
    a("v_lshlrev_b32 v3, 2, v1")
    a("v_xor_b32 v3, v3, v2")
    a("v_lshlrev_b32 v3, 4, v3")
    a(f"v_lshl_add_u32 v{vV}, v1, 8, v3")
    a(f"v_lshl_add_u32 v{vW}, v1, 13, v3")
    for p in range(1, 4): a(f"v_add_u32 v{vW+p}, {p*(4*8192-1024)}, v{vW}")
    a("v_xor_b32 v3, v1, v2")
    a("v_lshlrev_b32 v3, 4, v3")
    a(f"v_lshl_add_u32 v{vK}, v1, 8, v3")
    for p in range(1, 4): a(f"v_xor_b32 v{vK+p}, {p*64}, v{vK}")
    if o.get("rot", 1):
        a(f"s_mul_i32 s{sT0}, s{sB}, 5")
        a(f"s_lshr_b32 s{sT0}, s{sT0}, 2")
        a(f"s_mul_i32 s{sT3}, s{sHH}, 5")
        a(f"s_lshr_b32 s{sT3}, s{sT3}, 1")
        a(f"s_add_u32 s{sT0}, s{sT0}, s{sT3}")
        a(f"s_cmp_ge_u32 s{sT0}, 10")
        a(f"s_cselect_b32 s{sT3}, 10, 0")
        a(f"s_sub_u32 s{sT0}, s{sT0}, s{sT3}")
    else:
        a(f"s_mov_b32 s{sT0}, 0")
    a(f"s_lshl_b32 s{sWg}, s{sT1}, 8")
    a(f"s_add_u32 s{sWend}, s{sWg}, {640*8192}")
    a(f"s_lshl_b32 s{sT3}, s{sT0}, 19")
    a(f"s_add_u32 s{sWg}, s{sWg}, s{sT3}")
    a(f"s_mul_i32 s{sXg}, s{sB}, 122880")
    a(f"s_add_u32 s{sXend}, s{sXg}, 1280")
    a(f"s_lshl_b32 s{sT3}, s{sT0}, 7")
    a(f"s_add_u32 s{sXg}, s{sXg}, s{sT3}")
    a(f"s_lshl_b32 s{sKg}, s{sT2}, 17")
    a(f"s_mov_b32 s{sVg}, s{sKg}")
    a("s_waitcnt lgkmcnt(0)")
    srd(a, sX, sLD, sLD + 1, 983040)
    srd(a, sW, sLD + 6, sLD + 7, 5242880)
    srd(a, sK, sLD + 2, sLD + 3, 0x2000000)
    srd(a, sV, sLD + 4, sLD + 5, 0x2000000)
    ed = o.get("ed", "E")
    if ed == "ED":
        a(f"s_bitcmp1_b32 s{sB}, 0")
        a("s_cbranch_scc1 L_schedD")
    a("s_branch L_schedE")
    nod = o.get("nodma", "")
    def routine(name, srdn, vbase, nv, counts, sg, gstep, pol, tail):
        a.label(f"L_iss{name}")
        for g, n in enumerate(counts):
            so = sg
            if g > 0:
                a(f"s_add_u32 m0, m0, 4096")
                a(f"s_add_u32 s{sT0}, s{sg}, {gstep*g}")
                so = sT0
            for p in range(n):
                if name not in nod:
                    a(f"buffer_load_dwordx4 v{vbase + (p if nv == 4 else 0)}, s[{srdn}:{srdn+3}], s{so} offen offset:{p*1024}{pol} lds")
        tail()
        a(f"s_setpc_b64 s[{sRET}:{sRET+1}]")
    def wrap(sg, send, span):
        a(f"s_cmp_ge_u32 s{sg}, s{send}")
        a(f"s_cselect_b32 s{sT0}, {span}, 0")
        a(f"s_sub_u32 s{sg}, s{sg}, s{sT0}")
    def tailW():
        a(f"s_add_u32 s{sWg}, s{sWg}, {32*8192}"); wrap(sWg, sWend, 640 * 8192)
    def tailX():
        a(f"s_add_u32 s{sXg}, s{sXg}, 128"); wrap(sXg, sXend, 1280)
    routine("X", sX, vX, 4, (4, 4, 4), sXg, 32 * 1280, o.get("xpol", ""), tailX)
    routine("W", sW, vW, 4, (4, 4), sWg, 16 * 8192, o.get("wpol", ""), tailW)
    routine("K", sK, vK, 4, (4, 4, 4, 4), sKg, 4096, o.get("kvpol", " nt"), lambda: a(f"s_add_u32 s{sKg}, s{sKg}, 16384"))
    routine("V", sV, vV, 1, (4, 4, 4, 4), sVg, 4096, o.get("kvpol", " nt"), lambda: a(f"s_add_u32 s{sVg}, s{sVg}, 16384"))
    a.label("L_late_setup")
    srd(a, sWS, sWS, sWS + 1, 0x10000000)
    srd(a, sWO, sWO, sWO + 1, 5242880)
    srd(a, sDBG, sDBG, sDBG + 1, 256)
    for p in range(5):
        a(f"v_add_u32 v1, {64*p}, v0")
        a("v_mul_u32_u24 v2, 3277, v1")
        a("v_lshrrev_b32 v2, 16, v2")
        a("v_mul_u32_u24 v3, 20, v2")
        a("v_sub_u32 v3, v1, v3")
        a("v_mul_u32_u24 v2, 1280, v2")
        a("v_lshl_add_u32 v2, v3, 4, v2")
        a(f"v_subrev_u32 v{vO+p}, {(p*1024) if p < 4 else 0}, v2")
    a(f"v_lshlrev_b32 v{vB}, 4, v0")
    a(f"v_add_u32 v29, {L.XB}, v{vB}")
    a("v_and_b32 v26, 3, v0")
    a("v_lshlrev_b32 v26, 2, v26")
    a("v_and_b32 v27, 15, v0")
    a("v_lshlrev_b32 v27, 2, v27")
    a("v_lshlrev_b32 v23, 7, v0")
    a(f"s_mov_b32 s{sCNT}, 0x01010101")
    a(f"s_mul_i32 s{sOg}, s{sJ}, {1024*1280}")
    a(f"s_lshr_b32 s{sT3}, s2, 3")
    a(f"s_mul_i32 s{sT3}, s{sT3}, 40960")
    a(f"s_add_u32 s{sT3}, s{sT3}, s{sOg}")
    a(f"s_mul_i32 s{sT0}, s{sHH}, 320")
    a(f"s_add_u32 s{sOg}, s{sOg}, s{sT0}")
    a(f"s_add_u32 s{sOend}, s{sOg}, {1024*1280}")
    a(f"s_mul_i32 s{sT0}, s{sHH}, {256*1280}")
    a(f"s_add_u32 s{sOg}, s{sOg}, s{sT0}")
    a(f"s_lshl_b32 s{sT0}, s{sCL}, 5")
    a(f"s_lshl_b32 s{sT1}, s{sJ}, 3")
    a(f"s_add_u32 s{sT0}, s{sT0}, s{sT1}")
    a(f"s_mul_i32 s{sBg}, s{sT0}, 24576")
    a(f"s_add_u32 s{sBend}, s{sBg}, {8*24576}")
    a(f"s_add_u32 s{sT0}, s{sHH}, 1")
    a(f"s_and_b32 s{sT0}, s{sT0}, 3")
    a(f"s_mul_i32 s{sT0}, s{sT0}, 49152")
    a(f"s_add_u32 s{sBg}, s{sBg}, s{sT0}")
    a(f"s_lshl_b32 s{sCL}, s{sCL}, 4")
    a("v_lshrrev_b32 v2, 3, v0")
    a("v_lshlrev_b32 v2, 13, v2")
    a("v_bfe_u32 v1, v0, 1, 2")
    a("v_lshl_add_u32 v2, v1, 9, v2")
    a("v_and_b32 v1, 1, v0")
    a("v_lshl_add_u32 v2, v1, 7, v2")
    a(f"s_lshr_b32 s{sT2}, s2, 3")
    a(f"s_mul_i32 s{sT2}, s{sT2}, {20*8192}")
    a(f"s_lshl_b32 s{sT0}, s{sJ}, 11")
    a(f"s_add_u32 s{sT2}, s{sT2}, s{sT0}")
    a(f"s_add_u32 s{sT2}, s{sT2}, 256")
    if st.on:
        a("v_mov_b32 v30, 0"); a("v_mov_b32 v31, 0"); a("v_mov_b32 v3, 0")
    a(f"s_setpc_b64 s[{sRET}:{sRET+1}]")
    a.label("L_schedE")
    emit_loader_schedule(a, P, "E", st, o)
    if ed == "ED":
        a("s_branch L_loader_end")
        a.label("L_schedD")
        emit_loader_schedule(a, P, "D", st, o)
        a.label("L_loader_end")
    if st.on:
        a(f"s_lshl_b32 s{sT0}, s2, 10")
        a(f"s_add_u32 s{sT0}, s{sT0}, {STAMP + 0x100000}")
        a("v_lshlrev_b32 v29, 2, v0")
        for i, r in enumerate((30, 31, 3)):
            a(f"buffer_store_dword v{r}, v29, s[{sWS}:{sWS+3}], s{sT0} offen offset:{256*i}")
    a("s_endpgm")
    routine("B", sWS, vB, 1, (4, 2), sBg, 4096, " sc1", lambda: a(f"s_add_u32 s{sBg}, s{sBg}, 6144"))
    a.label("L_issO")
    pol = o.get("wopol", "")
    for ks in range(2):
        so = sOg
        if ks:
            a("s_add_u32 m0, m0, 1024")
            a(f"s_add_u32 s{sT0}, s{sOg}, {16*1280}"); so = sT0
        for p in range(4):
            if "O" not in nod: a(f"buffer_load_dwordx4 v{vO+p}, s[{sWO}:{sWO+3}], s{so} offen offset:{p*1024}{pol} lds")
        a("s_add_u32 m0, m0, 4096")
        a("s_nop 0")
        if "O" not in nod: a(f"buffer_load_dwordx4 v{vO+4}, s[{sWO}:{sWO+3}], s{so} offen{pol} lds")
    a(f"s_add_u32 s{sOg}, s{sOg}, {32*1280}")
    a(f"s_setpc_b64 s[{sRET}:{sRET+1}]")
    a.label("L_nextO")
    a(f"s_add_u32 s{sOg}, s{sOg}, {128*1280}")
    wrap(sOg, sOend, 1024 * 1280)
    a(f"s_setpc_b64 s[{sRET}:{sRET+1}]")
    a.label("L_nextB")
    a(f"s_add_u32 s{sBg}, s{sBg}, 24576")
    wrap(sBg, sBend, 8 * 24576)
    a(f"s_setpc_b64 s[{sRET}:{sRET+1}]")
    for nm, ld, cmp_, msk in (("G", f"buffer_load_dword v25, v26, s[{sDBG}:{sDBG+3}], s{sCL} offen sc1", f"v_cmp_ne_u32 vcc, s{sCNT}, v25", "15"),
                              ("F", f"buffer_load_dword v24, v27, s[{sWS}:{sWS+3}], s{sF1} offen sc1", "v_cmp_gt_u32 vcc, 1, v24", f"s{sT1}")):
        a.label(f"L_spin{nm}")
        a(f"s_mov_b32 s{sT0}, 0")
        a.label(f"L_spinl{nm}")
        a(ld)
        a(f"s_add_u32 s{sT0}, s{sT0}, 1")
        a(f"s_cmp_ge_u32 s{sT0}, {SPIN}")
        a(f"s_cbranch_scc1 L_spind{nm}")
        a("s_waitcnt vmcnt(0)")
        a(cmp_)
        a(f"s_and_b32 vcc_lo, vcc_lo, {msk}")
        a(f"s_cbranch_scc1 L_spinl{nm}")
        a.label(f"L_spind{nm}")
        a("s_waitcnt vmcnt(0)")
        a(f"s_setpc_b64 s[{sRET}:{sRET+1}]")
    a.label("L_awave")
    a(f"s_lshl_b32 s{sT0}, s{sWAVE}, 2")
    a(f"s_lshl_b32 s{sT3}, s{sHH}, 4")
    a(f"s_add_u32 s{sF1}, s{sF1}, s{sT3}")
    a(f"s_add_u32 s{sF1}, s{sF1}, s{sT0}")
    a(f"s_lshl_b32 s{sT3}, s{sJ}, 4")
    a(f"s_add_u32 s{sF2}, s{sF2}, s{sT3}")
    a(f"s_add_u32 s{sF2}, s{sF2}, s{sT0}")
    a("s_waitcnt lgkmcnt(0)")
    srd(a, sWS, sWS, sWS + 1, 0x10000000)
    srd(a, sOUT, sOUT, sOUT + 1, 8 * 96 * 1280 * 2)
    srd(a, sDBG, sDBG, sDBG + 1, 256)
    flag_store(a, sF1, 0)
    flag_store(a, sF2, 0)
    a(f"s_lshl_b32 s{sT0}, s{sBLK}, 8")
    a(f"s_add_u32 s{sT0}, s{sT0}, s{sT2}")
    a(f"s_mul_i32 s{sOoff}, s{sT0}, 24576")
    a(f"s_lshl_b32 s{sT0}, s{sWAVE}, 11")
    a(f"s_add_u32 s{sOoff}, s{sOoff}, s{sT0}")
    a(f"s_lshl_b32 s{sT0}, s{sCL}, 2")
    a(f"s_add_u32 s{sT0}, s{sT0}, s{sHH}")
    a(f"s_lshl_b32 s{sT0}, s{sT0}, 2")
    a(f"s_add_u32 s{sT0}, s{sT0}, s{sJ}")
    a(f"s_mul_i32 s{sPoff}, s{sT0}, 30720")
    a(f"s_mul_i32 s{sT0}, s{sWAVE}, 10240")
    a(f"s_add_u32 s{sPoff}, s{sPoff}, s{sT0}")
    a(f"s_add_u32 s{sPoff}, s{sPoff}, {WS_P}")
    a(f"s_mov_b32 s{sTH}, {THRESH}")
    a(f"s_mov_b32 s{sQS}, {QSCALE}")
    a(f"s_mov_b32 s{sQS+1}, {QSCALE}")
    a(f"v_mov_b32 v{vL0}, 0")
    a(f"v_mov_b32 v{vL1}, 0")
    a(f"v_lshlrev_b32 v{vL16}, 4, v0")
    a("v_and_b32 v64, 31, v0")
    a("v_lshrrev_b32 v65, 5, v0")
    a("v_and_b32 v66, 15, v64")
    a("v_xor_b32 v66, v66, v65")
    a("v_lshlrev_b32 v66, 4, v66")
    a("v_lshl_add_u32 v66, v64, 8, v66")
    a(f"v_add_u32 v66, {L.KB}, v66")
    for ks in range(8): a(f"v_xor_b32 v{aK+ks}, {ks*32}, v66")
    a("v_bfe_u32 v66, v64, 1, 3")
    a("v_xor_b32 v66, v66, v65")
    a("v_lshlrev_b32 v66, 4, v66")
    a("v_lshl_add_u32 v66, v64, 7, v66")
    a(f"s_lshl_b32 s{sT0}, s{sWAVE}, 12")
    a(f"s_add_u32 s{sT0}, s{sT0}, {L.XB}")
    a(f"v_add_u32 v66, s{sT0}, v66")
    for ks in range(4): a(f"v_xor_b32 v{aX+ks}, {ks*32}, v66")
    a("v_bfe_u32 v67, v0, 2, 2")
    a("v_and_b32 v68, 1, v0")
    a("v_lshlrev_b32 v68, 4, v68")
    a("v_bfe_u32 v69, v0, 1, 1")
    a("v_lshl_add_u32 v68, v69, 3, v68")
    a("v_bfe_u32 v69, v0, 4, 1")
    a("v_lshl_add_u32 v68, v69, 5, v68")
    a("v_lshl_add_u32 v69, v65, 2, v67")
    a("v_lshl_add_u32 v69, v69, 8, v68")
    a("v_lshl_add_u32 v69, v67, 6, v69")
    a(f"v_add_u32 v69, {L.VB}, v69")
    for dt in range(4): a(f"v_xor_b32 v{aV+dt}, {dt*64}, v69")
    a("v_lshl_add_u32 v70, v65, 3, v67")
    a("v_lshl_add_u32 v69, v70, 8, v68")
    a("v_lshl_add_u32 v69, v67, 6, v69")
    for dt in range(4): a(f"v_xor_b32 v{aW+dt}, {dt*64}, v69")
    a("v_mul_u32_u24 v70, 320, v70")
    a(f"v_add_u32 v{aO}, v70, v68")
    a(f"s_lshl_b32 s{sT0}, s{sWAVE}, 11")
    a(f"s_add_u32 s{sT0}, s{sT0}, {L.XB}")
    a(f"v_add_u32 v{aB}, s{sT0}, v{vL16}")
    a("s_waitcnt vmcnt(0)")
    for c in range(20):
        a("s_barrier")
        if c == 0: pad(a, o, 0)
        if c == 0:
            for r in q_reads(L, 0, 0): a(r)
        else:
            emit_tick(a, q_mfmas(c - 1, (c - 1) & 1), spread(q_reads(L, c, c & 1), 6))
        a("s_waitcnt lgkmcnt(0)")
    gen_middle(a, P, o, st)
    gen_tail(a, P, o, st)
    pad(a, o, 10)
    if st.on:
        a("s_waitcnt vmcnt(0)")
        st.stamp(a, 10)
        a(f"s_cmp_lg_u32 s{sWAVE}, 0")
        a("s_cbranch_scc1 L_exit")
        st.flush(a, range(11))
    a("s_endpgm")
    rare(a, 0)
    rare(a, 1)
    rescaleO(a)
    a.label("L_exit")
    a("s_endpgm")
    return P

def generate(fname, **o):
    a = Asm()
    a(HEADER_COMMENT.rstrip("\n"))
    a(f"; @launch grid=(256,1,1) block=(256,1,1) lds={LDSSZ}")
    a('.amdgcn_target "amdgcn-amd-amdhsa--gfx950"')
    P = gen_kernel(a, o)
    kernel_desc(a, NAME + "_kernel", 512, 102, 256)
    t = a.text()
    n = hazard.check(t)
    assert n == 0, f"{n} hazards"
    i0, i1 = t.index("L_schedE:"), t.index("L_awave:")
    nb_l = t[i0:i1].count("s_barrier"); nb_a = t[i1:].count("s_barrier")
    assert nb_a == P.NT and nb_l == P.NT * (2 if o.get("ed", "E") == "ED" else 1), (nb_a, nb_l, P.NT)
    open(fname, "w").write(t)
    return P

if __name__ == "__main__":
    P = generate("v3.s")
    generate("v3_st.s", stamps=1, trace2=1)
    s, n = P.schedule("E")
    for t, x in enumerate(s): print(t, x)
    print(P.oslot, P.NT, P.L.__dict__)
```

```python
import re, sys

TRANS = ("v_exp_f32", "v_log_f32", "v_rcp_f32", "v_rsq_f32", "v_sqrt_f32", "v_sin_f32", "v_cos_f32", "v_rcp_iflag_f32")

def regs_of(tok):
    tok = tok.strip()
    tok = tok.replace("abs(", "").replace(")", "").lstrip("-").replace("|", "")
    m = re.fullmatch(r"([vas])(\d+)", tok)
    if m: return {(m.group(1), int(m.group(2)))}
    m = re.fullmatch(r"([vas])\[(\d+):(\d+)\]", tok)
    if m: return {(m.group(1), i) for i in range(int(m.group(2)), int(m.group(3)) + 1)}
    if tok == "vcc": return {("s", "vcc")}
    if tok == "m0": return {("s", "m0")}
    if tok == "exec": return {("s", "exec")}
    return set()

class I:
    pass

def parse(text):
    ins = []; labels = {}
    for ln, raw in enumerate(text.split("\n"), 1):
        l = raw.split(";")[0].strip()
        if not l or l.startswith("."): continue
        if l.endswith(":"):
            labels[l[:-1]] = len(ins); continue
        p = l.split(None, 1)
        op = p[0]; rest = p[1] if len(p) > 1 else ""
        ops = [x.strip() for x in rest.split(",")] if rest else []
        mods = []
        if ops:
            parts = ops[-1].split()
            ops[-1] = parts[0]; mods = parts[1:]
        i = I(); i.op = op; i.ops = ops; i.mods = mods; i.ln = ln; i.text = l
        i.w = set(); i.r = set(); i.srcC = set(); i.srcAB = set()
        i.mfma = op.startswith("v_mfma")
        i.valu = op.startswith("v_") and not i.mfma
        i.trans = op.replace("_e32", "").replace("_e64", "") in TRANS
        i.vmem = op.startswith(("buffer_", "global_", "flat_"))
        i.ds = op.startswith("ds_")
        i.salu = op.startswith("s_")
        i.ws = 1
        if op == "s_nop": i.ws = int(ops[0], 0) + 1
        R = [regs_of(x) for x in ops]
        if i.mfma:
            i.w = R[0]; i.srcAB = R[1] | R[2]; i.srcC = R[3]; i.r = i.srcAB | i.srcC
            i.passes = 8 if "32x32x16" in op else 4
        elif i.valu:
            if op.startswith("v_cmp"):
                i.w = R[0]; i.r = set().union(*R[1:])
            elif op.startswith("v_permlane32_swap") or op.startswith("v_permlane16_swap"):
                i.w = R[0] | R[1]; i.r = R[0] | R[1]
            elif op.startswith(("v_add_co", "v_addc_co", "v_sub_co")):
                i.w = R[0] | R[1]; i.r = set().union(*R[2:])
            else:
                i.w = R[0]; i.r = set().union(*R[1:]) if len(R) > 1 else set()
                if op.startswith(("v_fmac", "v_dot2c")): i.r |= R[0]
        elif i.ds:
            if "read" in op or "permute" in op or "swizzle" in op: i.w = R[0]; i.r = set().union(*R[1:])
            else: i.r = set().union(*R)
        elif i.vmem:
            if "lds" in mods or "_lds_" in op:
                i.r = set().union(*R) | {("s", "m0")}; i.ldsdma = True
            elif "load" in op:
                i.w = R[0]; i.r = set().union(*R[1:])
            elif op.startswith("global_store"):
                i.r = set().union(*R); i.data = R[1]
            else:
                i.r = set().union(*R); i.data = R[0]
                if "atomic" in op and "sc0" in mods: i.w = R[0]
        elif i.salu:
            if op.startswith(("s_cmp", "s_cbranch", "s_branch", "s_waitcnt", "s_barrier", "s_nop", "s_endpgm", "s_sleep", "s_setprio", "s_setpc", "s_bitcmp")):
                i.r = set().union(*R) if R else set()
            else:
                i.w = R[0] if R else set(); i.r = set().union(*R[1:]) if len(R) > 1 else set()
                if "saveexec" in op: i.w |= {("s", "exec")}
        ins.append(i)
    return ins, labels

def succ(ins, labels, k, callret):
    i = ins[k]
    if i.op == "s_endpgm": return []
    if i.op == "s_branch": return [labels[i.ops[0]]]
    if i.op.startswith("s_cbranch"): return [labels[i.ops[0]], k + 1]
    if i.op == "s_call_b64": return [labels[i.ops[1]]]
    if i.op == "s_setpc_b64": return callret.get(i.ops[0], [])
    return [k + 1] if k + 1 < len(ins) else []

def need(p, c):
    n = 0
    vg = lambda s: {x for x in s if x[0] in "va"}
    sg = lambda s: {x for x in s if x[0] == "s"}
    if p.valu:
        if c.mfma and (vg(p.w) & c.r): n = max(n, 2)
        if p.trans and c.valu and not c.trans and (p.w & c.r): n = max(n, 1)
        if c.op.startswith("v_permlane") and (vg(p.w) & c.r): n = max(n, 2)
        if c.op.startswith(("v_readfirstlane", "v_readlane")) and (vg(p.w) & c.r): n = max(n, 1)
        if c.valu and (sg(p.w) & c.r): n = max(n, 2)
        if c.vmem and (sg(p.w) & c.r): n = max(n, 5)
        if "dpp" in c.text and (vg(p.w) & c.r): n = max(n, 2)
        if ("s", "exec") in p.w and c.mfma: n = max(n, 4)
    if p.mfma:
        big = {8: 12, 4: 8}[p.passes]; ov = {8: 10, 4: 6}[p.passes]; war = {8: 7, 4: 3}[p.passes]
        if c.mfma:
            if p.w & c.srcAB: n = max(n, big)
            if (p.w & c.srcC) and not (p.w == c.srcC and p.passes == c.passes): n = max(n, ov)
            if (p.w & c.w) and not (p.w == c.srcC): n = max(n, ov)
        elif c.valu:
            if p.w & (c.r | c.w): n = max(n, big)
            if p.srcC & c.w: n = max(n, war)
        elif c.vmem or c.ds:
            if p.w & (c.r | c.w): n = max(n, big)
    if p.salu and ("s", "m0") in p.w and getattr(c, "ldsdma", False): n = max(n, 1)
    if p.vmem and hasattr(p, "data") and len(p.data) >= 3 and (c.valu or c.mfma or c.ds or c.vmem) and (p.data & c.w): n = max(n, 2)
    return n

def check(text, verbose=True):
    ins, labels = parse(text)
    callret = {}
    for k, i in enumerate(ins):
        if i.op == "s_call_b64": callret.setdefault(i.ops[0], []).append(k + 1)
    errs = set()
    for k, p in enumerate(ins):
        if not (p.valu or p.mfma or p.vmem or (p.salu and ("s", "m0") in p.w)): continue
        lim = 12 if p.mfma else 5
        stack = [(s, 0) for s in succ(ins, labels, k, callret)]
        seen = {}
        while stack:
            j, d = stack.pop()
            if d >= lim or j >= len(ins): continue
            if seen.get(j, 99) <= d: continue
            seen[j] = d
            c = ins[j]
            n = need(p, c)
            if n > d: errs.add((p.ln, c.ln, n, d, p.text, c.text))
            for s in succ(ins, labels, j, callret): stack.append((s, d + c.ws))
    if verbose:
        for e in sorted(errs): print("HAZARD line %d -> %d need %d have %d:\n   %s\n   %s" % e)
    return len(errs)

if __name__ == "__main__":
    n = check(open(sys.argv[1]).read())
    print("hazards:", n)
```

```python
import gen3, sys
K, V = "K", "V"
preh = {(K,0):3,(K,1):7,(V,0):11,(K,2):15,(V,1):19}
c32 = dict(NK=3, NV=2, parK=0, parH=1, pre=preh, quiet=[19], natf=1, nflag1=20, v15gap=0, olate=1, f2d=3, v15slot=3, touch=[33,33,35,35,37], olist=[19,20,21,22,26,27,28,29])
gen3.generate("p_none.s", **c32)
gen3.generate("p_end70.s", pad=(10, 7000), **c32)
gen3.generate("p_v15_55.s", pad=(3, 5500), **c32)
gen3.generate("p_head25.s", pad=(1, 2500), **c32)
gen3.generate("p_first10.s", pad=(0, 1000), **c32)
```

```python
import gen3, sys
K, V = "K", "V"
preh = {(K,0):3,(K,1):7,(V,0):11,(K,2):15,(V,1):19}
c32 = dict(NK=3, NV=2, parK=0, parH=1, pre=preh, quiet=[19], natf=1, nflag1=20, v15gap=0, olate=1, f2d=3, v15slot=3, touch=[33,33,35,35,37], olist=[19,20,21,22,26,27,28,29])
gen3.generate("p_none.s", **c32)
gen3.generate("p_end70.s", pad=(10, 7000), **c32)
gen3.generate("p_v15_55.s", pad=(3, 5500), **c32)
gen3.generate("p_head25.s", pad=(1, 2500), **c32)
gen3.generate("p_first10.s", pad=(0, 1000), **c32)
gen3.generate("p_end50.s", pad=(10, 5000), **c32)
gen3.generate("p_end110.s", pad=(10, 11000), **c32)
gen3.generate("p_end45.s", pad=(10, 4500), **c32)
gen3.generate("p_end40.s", pad=(10, 4000), **c32)
```

```python
import sys, struct, math
from asmlib import *
import hazard
from gen2 import (MF, WS_O, WS_P, WS_F1, WS_F2, STAMP, QSCALE, THRESH, SPIN, srd, spread, merge, emit_tick, R,
                  sX, sK, sV, sW, sWS, sWO, sOUT, sDBG, sWAVE, sB, sHH, sJ, sBLK, sT0, sT1, sT2, sT3, sCL, sRET, sCNT, sF1, sF2,
                  sST, sLD, sPC, sEX, Stamps)

LDSSZ = 163840
sWg, sWend, sXg, sXend, sKg, sVg, sOg, sOend, sBg, sBend, sL = 50, 51, 52, 53, 54, 55, 56, 57, 58, 59, 60
sOoff, sTH, sQS, sPoff = 50, 51, 52, 54

aK, aV, aW, aX, aO, aB = 1, 9, 13, 17, 21, 22
vL16, vL0, vL1, vM0, vM1 = 23, 24, 25, 26, 27
vT = 28
vR = 30
vP, vNEG, vS = 32, 48, (64, 96)
vQA = 128
WF = (('v', 192), ('a', 96))
XF = (224, 232)
vOA = 128
OF = (('v', 208), ('a', 64))
vBF = 248
aPB = 128
AO, AQ, AKF, AVF = 0, (64, 96), 128, 192

class Layout:
    def __init__(self, o):
        self.NK, self.NV = o.get("NK", 2), o.get("NV", 3)
        self.PSZ = LDSSZ - 24576 - 16384 * (self.NK + self.NV)
        self.PB = 0
        self.VB = self.PSZ
        self.KB = self.VB + 16384 * self.NV
        self.XB = self.KB + 16384 * self.NK
        self.v15 = o.get("v15slot", 15 % self.NV)
        self.NW = self.PSZ // 8192
        self.NO = self.PSZ // 10240
        assert self.KB % 256 == 0

def softmax_ops(S, lo, hi):
    ops = []; pend = []
    for j in range(lo, hi, 2):
        ops.append((f"v_exp_f32 v{S+j}, v{S+j}", 8))
        ops.append((f"v_exp_f32 v{S+j+1}, v{S+j+1}", 8))
        ops += pend
        pend = [(f"v_add_f32 v{vL0}, v{vL0}, v{S+j}", 4), (f"v_add_f32 v{vL1}, v{vL1}, v{S+j+1}", 4),
                (f"v_cvt_pk_bf16_f32 v{vP+j//2}, v{S+j}, v{S+j+1}", 4)]
    if pend: ops.append(("s_nop 0", 4))
    return ops + pend

def max_ops(S):
    ops = []
    for sub, m in ((0, vM0), (1, vM1)):
        b = S + 16 * sub
        ops.append(f"v_max3_f32 v{m}, v{b}, v{b+1}, v{b+2}")
        for j in range(3, 15, 2): ops.append(f"v_max3_f32 v{m}, v{m}, v{b+j}, v{b+j+1}")
    ops.append(f"v_max3_f32 v{vM0}, v{vM0}, v{S+15}, v{S+31}")
    ops.append(f"v_max_f32 v{vM0}, v{vM0}, v{vM1}")
    return ops

def crosshalf_ops(r, t, op):
    return [f"v_mov_b32 v{t}, v{r}", "s_nop 1", f"v_permlane32_swap_b32 v{r}, v{t}", "s_nop 0", f"{op} v{r}, v{r}, v{t}"]

def init_ops(S):
    return max_ops(S) + crosshalf_ops(vM0, vT, "v_max_f32") + [f"v_sub_f32 v{vNEG+j}, 0, v{vM0}" for j in range(16)] \
        + [f"v_sub_f32 v{S+j}, v{S+j}, v{vM0}" for j in range(32)]

def lfin_ops():
    return [f"v_add_f32 v{vL0}, v{vL0}, v{vL1}"] + crosshalf_ops(vL0, vT, "v_add_f32") + [f"v_rcp_f32 v{vR}, v{vL0}", f"v_mov_b32 v{vL1}, 0", f"v_mov_b32 v{vL0}, 0"]

def k_reads(slot):
    return [f"ds_read_b128 {R('a', AKF+(sub*8+ks)*4, 4)}, v{aK+ks} offset:{slot*16384+sub*8192}" for sub in range(2) for ks in range(8)]
def v_reads(slot, dtmajor=False):
    idx = [(ks, dt) for dt in range(4) for ks in range(4)] if dtmajor else [(ks, dt) for ks in range(4) for dt in range(4)]
    return [f"ds_read_b64_tr_b16 {R('a', AVF+(ks*4+dt)*4+2*t, 2)}, v{aV+dt} offset:{slot*16384+ks*4096+t*2048}" for ks, dt in idx for t in range(2)]
def qk_mfmas(i):
    S = vS[i & 1]; q = AQ[i >> 3]; c0 = "0" if i % 8 == 0 else R('v', vNEG, 16)
    r = []
    for sub in range(2):
        for ks in range(8):
            d = R('v', S + 16 * sub, 16)
            r.append(f"{MF} {d}, {R('a', AKF+(sub*8+ks)*4, 4)}, {R('a', q+4*ks, 4)}, {d if ks else c0}")
    return r
def pv_mfmas(i, dtmajor=False):
    idx = [(ks, dt) for dt in range(4) for ks in range(4)] if dtmajor else [(ks, dt) for ks in range(4) for dt in range(4)]
    return [f"{MF} {R('a', AO+16*dt, 16)}, {R('a', AVF+(ks*4+dt)*4, 4)}, {R('v', vP+4*ks, 4)}, {'0' if (ks == 0 and i % 8 == 0) else R('a', AO+16*dt, 16)}" for ks, dt in idx]

def q_reads(L, c, buf):
    wk, wb = WF[buf]; xb = XF[buf]
    ws = c % L.NW; xs = (c >> 1) & 1
    xr = [f"ds_read_b128 {R('v', xb+4*ks, 4)}, v{aX+2*(c&1)+ks} offset:{xs*12288}" for ks in range(2)]
    def wr(ks): return [f"ds_read_b64_tr_b16 {R(wk, wb+(ks*4+dt)*4+2*t, 2)}, v{aW+dt} offset:{ws*8192+ks*4096+t*1024}" for dt in range(4) for t in range(2)]
    return [xr[0]] + wr(0) + [xr[1]] + wr(1)
def q_mfmas(c, buf):
    wk, wb = WF[buf]; xb = XF[buf]
    return [f"{MF} {R('v', vQA+16*dt, 16)}, {R(wk, wb+(ks*4+dt)*4, 4)}, {R('v', xb+4*ks, 4)}, {'0' if (c % 20 == 0 and ks == 0) else R('v', vQA+16*dt, 16)}"
            for ks in range(2) for dt in range(4)]
def o_wreads(slot, buf=0, ks_list=(0, 1)):
    k, b = OF[buf]
    base = slot * 10240
    areg = (aO, aK, aK + 1)[base // 61440]
    base %= 61440
    return [f"ds_read_b64_tr_b16 {R(k, b+(ks*5+ct)*4+2*t, 2)}, v{areg} offset:{base+ks*5120+t*1280+ct*64}" for ks in ks_list for ct in range(5) for t in range(2)]
def o_breads(c, dst=vBF):
    return [f"ds_read_b128 {R('v', dst+4*ks, 4)}, v{aB} offset:{(c&3)*6144+ks*1024}" for ks in range(2)]
def o_mfmas(c, buf=0, bk='v', bb=vBF):
    k, b = OF[buf]
    return [f"{MF} {R('v', vOA+16*ct, 16)}, {R(k, b+(ks*5+ct)*4, 4)}, {R(bk, bb+4*ks, 4)}, {'0' if (c == 0 and ks == 0) else R('v', vOA+16*ct, 16)}"
            for ks in range(2) for ct in range(5)]

def q_convert_ops(dstq, pk):
    ops = []
    for dt in range(4):
        b = vQA + 16 * dt
        if pk: ops += [f"v_pk_mul_f32 v[{b+2*m}:{b+2*m+1}], v[{b+2*m}:{b+2*m+1}], s[{sQS}:{sQS+1}]" for m in range(8)]
        else: ops += [f"v_mul_f32 v{b+j}, s{sQS}, v{b+j}" for j in range(16)]
        ops += [f"v_cvt_pk_bf16_f32 v{b+m}, v{b+2*m}, v{b+2*m+1}" for m in range(8)]
        ops += [f"v_accvgpr_write_b32 a{dstq+8*dt+m}, v{b+m}" for m in range(8)]
    return ops

def finalize_ops(dt, tmp, pkd, pk, lds):
    ops = [f"v_accvgpr_read_b32 v{tmp+j}, a{AO+16*dt+j}" for j in range(16)]
    if pk: ops += [f"v_pk_mul_f32 v[{tmp+2*m}:{tmp+2*m+1}], v[{tmp+2*m}:{tmp+2*m+1}], v[{vR}:{vR+1}] op_sel_hi:[1,0]" for m in range(8)]
    else: ops += [f"v_mul_f32 v{tmp+j}, v{tmp+j}, v{vR}" for j in range(16)]
    ops += [f"v_cvt_pk_bf16_f32 v{pkd+8*dt+m}, v{tmp+2*m}, v{tmp+2*m+1}" for m in range(8)]
    ops.append(f"s_add_u32 s{sT0}, s{sOoff}, {dt*6144}")
    for u in range(2):
        ops.append(f"buffer_store_dwordx4 {R('v', pkd+8*dt+4*u, 4)}, v{vL16}, s[{sWS}:{sWS+3}], s{sT0} offen offset:{u*1024} sc1")
        if lds: ops.append(f"ds_write_b128 v{aB}, {R('v', pkd+8*dt+4*u, 4)} offset:{dt*6144+u*1024}")
    return ops

def flag_store(a, soff, val):
    a(f"v_mov_b32 v{vT}, {val}")
    a(f"v_mov_b32 v{vT+1}, 0")
    a("s_mov_b64 exec, 1")
    a(f"buffer_store_dword v{vT}, v{vT+1}, s[{sWS}:{sWS+3}], s{soff} offen sc1")
    a("s_mov_b64 exec, -1")

def wave_poll(a, sline, val, tag):
    a(f"s_and_b32 s{sT0}, s{sline}, 0xffffffcf")
    a(f"s_mov_b32 s{sT1}, 0")
    a("s_mov_b64 exec, 15")
    a.label(f"L_wp{tag}")
    a(f"buffer_load_dword v{vM0}, v{vL16}, s[{sWS}:{sWS+3}], s{sT0} offen sc1")
    a(f"s_add_u32 s{sT1}, s{sT1}, 1")
    a(f"s_cmp_ge_u32 s{sT1}, {SPIN}")
    a(f"s_cbranch_scc1 L_wpd{tag}")
    a("s_waitcnt vmcnt(0)")
    a(f"v_cmp_gt_u32 vcc, {val}, v{vM0}")
    a(f"s_cbranch_vccnz L_wp{tag}")
    a.label(f"L_wpd{tag}")
    a("s_mov_b64 exec, -1")

def rare_check(a, nxt):
    a(f"v_cmp_lt_f32 vcc, s{sTH}, v{vM0}")
    lab = a.newlabel("L_norare")
    a(f"s_cbranch_vccz {lab}")
    a(f"s_call_b64 s[{sRET}:{sRET+1}], L_rare{nxt}")
    a.label(lab)

def rare(a, buf):
    S = vS[buf]
    a.label(f"L_rare{buf}")
    for t in crosshalf_ops(vM0, vT, "v_max_f32"): a(t)
    a(f"v_max_f32 v{vM0}, 0, v{vM0}")
    a(f"v_sub_f32 v{vM1}, 0, v{vM0}")
    a(f"v_exp_f32 v{vM1}, v{vM1}")
    a("s_nop 7")
    for j in range(32): a(f"v_sub_f32 v{S+j}, v{S+j}, v{vM0}")
    a("s_branch L_rescaleO")

def rescaleO(a):
    a.label("L_rescaleO")
    for j in range(16): a(f"v_sub_f32 v{vNEG+j}, v{vNEG+j}, v{vM0}")
    a(f"v_mul_f32 v{vL0}, v{vL0}, v{vM1}")
    a(f"v_mul_f32 v{vL1}, v{vL1}, v{vM1}")
    for j in range(0, 64, 2):
        for k in range(2): a(f"v_accvgpr_read_b32 v{vT+k}, a{AO+j+k}")
        for k in range(2): a(f"v_mul_f32 v{vT+k}, v{vT+k}, v{vM1}")
        for k in range(2): a(f"v_accvgpr_write_b32 a{AO+j+k}, v{vT+k}")
    a("s_nop 1")
    a(f"s_setpc_b64 s[{sRET}:{sRET+1}]")

class Plan:
    def __init__(self, o):
        self.o = o
        L = self.L = Layout(o)
        self.HT = 20
        M0 = self.M0 = self.HT
        qpat = o.get("qpat", [0, 1, 1, 2, 1, 2, 1, 2, 1, 2, 1, 2, 1, 2, 1])
        assert sum(qpat) == 20 and len(qpat) <= 15
        self.qch = {}; c = 20
        for n, k in enumerate(qpat):
            self.qch[n] = list(range(c, c + k)); c += k
        ol = o.get("olist", [20, 21, 22, 23, 25, 26, 27, 28, 29, 30, 31])
        self.och = {n: c for c, n in enumerate(ol)}
        self.NOM = len(ol)
        assert self.NOM <= 12
        self.nV15 = 32
        self.tV15 = M0 + 32
        self.Tc = self.tV15 + (20 - self.NOM) + 1
        self.NT = self.Tc + 1
        it = self.items = {}
        def add(key, need, last, lo, sz, nl): it[key] = dict(need=need, last=last, lo=lo, hi=lo + sz, nl=nl)
        wt = {c: c for c in range(20)}
        for n, cs in self.qch.items():
            for c in cs: wt[c] = M0 + n
        for c in range(40): add(("W", c), wt[c], wt[c], L.PB + (c % L.NW) * 8192, 8192, 8)
        for m in range(20): add(("X", m), wt[2*m], wt[2*m+1], L.XB + (m & 1) * 12288, 12288, 12)
        for i in range(16):
            t = M0 + max(0, 2 * i - 1); add(("K", i), t, t, L.KB + (i % L.NK) * 16384, 16384, 16)
            t = M0 + 2 * i + 2; add(("V", i), t, t, L.VB + (i % L.NV if i < 15 else L.v15) * 16384, 16384, 16)
        self.nfin = 18
        ot = {c: M0 + n for n, c in self.och.items()}
        for c in range(12):
            t = last = ot.get(c, self.tV15 + c - self.NOM)
            add(("B", c), t if c >= 4 else M0 + self.nfin, last, L.XB + (c & 3) * 6144, 6144, 6)
        self.oslot = {}
        for c in range(self.NOM):
            self.oslot[c] = c % L.NO
            add(("O", c), ot[c], ot[c], L.PB + self.oslot[c] * 10240, 10240, 10)
        nslots = (LDSSZ - 24576) // 10240
        def free_at(lo, hi):
            return max([v["last"] + 2 for v in it.values() if v["lo"] < hi and lo < v["hi"]] + [0])
        for c in range(self.NOM, 32):
            s = min(range(nslots), key=lambda s: (free_at(s * 10240, s * 10240 + 10240), s))
            f = free_at(s * 10240, s * 10240 + 10240)
            if c <= 20: need = last = self.tV15 + c - self.NOM
            else: need, last = self.Tc, 999
            assert f <= need, (c, f, need)
            self.oslot[c] = s
            add(("O", c), need, last, s * 10240, 10240, 10)
        for k, v in it.items():
            v["free"] = max([w["last"] + 2 for kk, w in it.items() if kk != k and w["lo"] < v["hi"] and v["lo"] < w["hi"] and w["last"] < v["need"]] + [0])
            for kk, w in it.items():
                if kk != k and w["lo"] < v["hi"] and v["lo"] < w["hi"]:
                    assert w["last"] < v["need"] or v["last"] < w["need"], (k, kk)
        assert it[("B", 0)]["free"] <= M0 + self.nfin + 1 and it[("B", 3)]["free"] <= M0 + self.nfin + 1

    def schedule(self, variant):
        o, it, M0 = self.o, self.items, self.M0
        pos = {}
        DW = o.get("DW", 5)
        for c in range(20): pos[("W", c)] = max(it[("W", c)]["free"], c - DW + 1, 0)
        for m in range(10): pos[("X", m)] = it[("X", m)]["free"]
        pre = o.get("pre" + variant, o.get("pre", {("K", 0): 17, ("K", 1): 17, ("V", 0): 19}))
        pos.update(pre)
        parK, parH = o.get("parK", 1), o.get("parH", o.get("parK", 1))
        quiet = set(M0 + q for q in o.get("quiet", []))
        DKV, DH = o.get("DKV", 3), o.get("DH", 2)
        def place(key, d, prev):
            v = it[key]
            par = parK if key[0] in "KV" else parH
            ok = lambda s: (s - M0 - par) % 2 == 0 and s not in quiet
            lo = max(v["free"], prev, M0 - 2)
            if o.get("clump", 1):
                cand = [s for s in range(lo, v["need"]) if ok(s)]
                good = [s for s in cand if s <= v["need"] - d + 1]
                s = good[-1] if good else (cand[0] if cand else lo)
            else:
                s = max(lo, v["need"] - d + 1)
            assert s <= v["need"], (key, s, v)
            pos[key] = s; return s
        for typ, rng, d in (("K", range(16), DKV), ("V", range(16), DKV), ("W", range(20, 40), DH), ("X", range(10, 20), DH),
                            ("B", range(4, 12), 2), ("O", range(self.NOM), DH)):
            prev = 0
            for i in rng:
                if (typ, i) in pos: prev = pos[(typ, i)]; continue
                if (typ, i) == ("B", 4) and not o.get("natf", 0):
                    prev = pos[(typ, i)] = it[(typ, i)]["need"] - 1; continue
                if typ == "X" and o.get("xcache", 1):
                    prev = pos[(typ, i)] = max(it[(typ, i)]["free"], prev); continue
                if typ in "KV" and i < o.get("asap", 0): d = 99
                elif typ in "KV": d = DKV
                prev = place((typ, i), d, prev)
        pos[("V", 15)] = max(it[("V", 15)]["free"], pos[("V", 14)], pos[("K", 15)] + o.get("v15gap", 1))
        prev = pos[("O", self.NOM - 1)]
        pace = o.get("opace", 3); s = max(prev, pos[("V", 15)] + o.get("olate", 0)); k = 0
        for c in range(self.NOM, 32):
            v = it[("O", c)]
            if k >= pace and s < v["need"] - 1: s += 1; k = 0
            if v["free"] > s: s = v["free"]; k = 0
            assert s <= v["need"], (c, s, v)
            pos[("O", c)] = s; k += 1
        sched = [[] for _ in range(self.NT + 1)]
        hitfirst = o.get("hitfirst", 1)
        def key(x):
            miss = x[0] in "KV"
            late = x[0] == "O" and x[1] >= self.NOM
            if pos[x] < M0 - 2: return (0 if (miss and x in pre and o.get("prefirst", 0)) else 1, it[x]["need"], x[0] != "X", x[1])
            return (2 if late else (int(miss) if hitfirst else int(not miss)), it[x]["need"], x[0] != "X", x[1])
        for x in sorted(pos, key=key): sched[pos[x]].append(x)
        need = {k: v["need"] for k, v in it.items()}
        if o.get("xcache", 1):
            for m in range(10): sched[it[("X", m)]["need"] + 1].append(("XR", m))
        g = M0 + 12
        sched[g].insert(0, ("G", 0)); need[("G", 0)] = g + 2
        sched[g + 3].insert(0, ("CG", 0))
        for p in range(3):
            s = pos[("B", 4 + 4 * p)] if p < 2 else M0 + 30
            fs = s - (1 if (p == 0 and not o.get("natf", 0)) else 2)
            if p == 2: fs = s - o.get("f2d", 2)
            sched[fs].insert(0, ("F", p)); need[("F", p)] = s - 1
            if p < 2:
                if p == 0 and not o.get("natf", 0):
                    bs = [x for x in sched[s] if x[0] == "B"]
                    sched[s] = [x for x in sched[s] if x[0] != "B"] + bs
                sched[s].insert(sched[s].index(("B", 4 + 4 * p)), ("CF", p))
            else:
                sched[s].append(("CF", p))
        for k, tt in enumerate(o.get("touch" + variant, o.get("touch", [M0 + 3, M0 + 5, M0 + 7, M0 + 9, M0 + 11]))):
            sched[tt].append(("T", k)); need[("T", k)] = 999
        for k, tt in enumerate(o.get("touchq" + variant, o.get("touchq", []))):
            sched[tt].append(("U", k)); need[("U", k)] = 999
        return sched, need

def xreg(m, p):
    r = 32 + m * 48 + p * 4
    return R('v', r, 4) if r < 256 else R('a', r - 256, 4)

def emit_loader_schedule(a, P, variant, st, o):
    sched, need = P.schedule(variant)
    it = P.items
    issued = []; total = 0
    vF, vG, vB = 24, 25, 22
    xc = o.get("xcache", 1)
    for t in range(P.NT):
        ldsop = False
        for x in sched[t]:
            ty, c = x
            if ty == "CG":
                lab = a.newlabel("L_cg")
                a(f"v_cmp_ne_u32 vcc, s{sCNT}, v{vG}")
                a("s_and_b32 vcc_lo, vcc_lo, 15")
                a(f"s_cbranch_scc0 {lab}")
                a(f"s_call_b64 s[{sRET}:{sRET+1}], L_spinG")
                a.label(lab); continue
            if ty == "CF":
                lab = a.newlabel("L_cf")
                a(f"s_add_u32 s{sT1}, s{sHH}, {c+1}")
                a(f"s_and_b32 s{sT1}, s{sT1}, 3")
                a(f"s_lshl_b32 s{sT1}, s{sT1}, 2")
                a(f"s_lshl_b32 s{sT1}, 7, s{sT1}")
                a(f"v_cmp_gt_u32 vcc, 1, v{vF}")
                a(f"s_and_b32 vcc_lo, vcc_lo, s{sT1}")
                a(f"s_cbranch_scc0 {lab}")
                a(f"s_call_b64 s[{sRET}:{sRET+1}], L_spinF")
                a.label(lab); continue
            if ty == "XR":
                for p in range(12): a(f"ds_read_b128 {xreg(c, p)}, v29 offset:{(c&1)*12288+p*1024}")
                ldsop = True; continue
            if ty == "X" and c >= 10 and xc:
                for p in range(12): a(f"ds_write_b128 v29, {xreg(c-10, p)} offset:{(c&1)*12288+p*1024}")
                ldsop = True; continue
            if ty == "G":
                a(f"buffer_load_dword v{vG}, v26, s[{sDBG}:{sDBG+3}], s{sCL} offen sc1"); n = 1
            elif ty == "F":
                a(f"buffer_load_dword v{vF}, v27, s[{sWS}:{sWS+3}], s{sF1} offen sc1"); n = 1
            elif ty == "T":
                a(f"buffer_load_dword v28, v23, s[{sWO}:{sWO+3}], s{sT3} offen{o.get('tpol','')}")
                a(f"s_add_u32 s{sT3}, s{sT3}, 8192"); n = 1
            elif ty == "U":
                if c == 2: a("s_mov_b32 exec_hi, 0")
                a(f"buffer_load_dword v28, v2, s[{sW}:{sW+3}], s{sT2} offen{o.get('upol','')}")
                if c == 2: a("s_mov_b32 exec_hi, -1")
                a(f"s_add_u32 s{sT2}, s{sT2}, {8*8192}"); n = 1
            else:
                if ty == "W" and c == 20:
                    a(f"s_add_u32 s{sWg}, s{sWg}, 256")
                    a(f"s_add_u32 s{sWend}, s{sWend}, 256")
                if ty == "O" and c == 16:
                    a(f"s_add_u32 s{sOg}, s{sOg}, {128*1280}")
                    a(f"s_add_u32 s{sOend}, s{sOend}, {128*1280}")
                a(f"s_mov_b32 m0, {it[x]['lo']}")
                a(f"s_call_b64 s[{sRET}:{sRET+1}], L_iss{ty}")
                if ty in "OB" and c % 4 == 3: a(f"s_call_b64 s[{sRET}:{sRET+1}], L_next{ty}")
                n = it[x]["nl"]
            total += n; issued.append((x, total))
        if t == 0: a(f"s_call_b64 s[{sRET}:{sRET+1}], L_late_setup")
        req = max(c for x, c in issued if need[x] <= t)
        if st.on and t > 0:
            a("s_waitcnt lgkmcnt(0)")
            a(f"v_writelane_b32 v30, s70, {min(63, t-1)}")
            if o.get("trace2"): a("s_memrealtime s[72:73]")
        a(f"s_waitcnt vmcnt({min(63, total - req)})" + (" lgkmcnt(0)" if ldsop else ""))
        if st.on and t > 0 and o.get("trace2"):
            a("s_memrealtime s[74:75]")
            a("s_waitcnt lgkmcnt(0)")
            a(f"v_writelane_b32 v31, s72, {min(63, t)}")
            a(f"v_writelane_b32 v3, s74, {min(63, t)}")
        a("s_barrier")
        if st.on: a("s_memrealtime s[70:71]")
    if st.on:
        a("s_waitcnt lgkmcnt(0)")
        a(f"v_writelane_b32 v30, s70, {min(63, P.NT-1)}")

def pad(a, o, point):
    p = o.get("pad")
    if not p or p[0] != point: return
    a("s_waitcnt lgkmcnt(0)")
    if len(p) > 2:
        a(f"s_and_b32 s86, s2, {p[3]}")
        a(f"s_cmp_lg_u32 s86, {p[2]}")
        a("s_cbranch_scc1 L_padx")
    a(f"s_add_u32 s86, s84, {p[1]}")
    a.label("L_pad")
    a("s_memrealtime s[82:83]")
    a("s_waitcnt lgkmcnt(0)")
    a("s_sub_u32 s87, s82, s86")
    a("s_cmp_lt_i32 s87, 0")
    a("s_cbranch_scc1 L_pad")
    a.label("L_padx")

def gen_middle(a, P, o, st):
    L = P.L
    NA = o.get("NA", 24)
    def projparts(n):
        rd, mf = [], []
        for k, c in enumerate(P.qch.get(n, [])):
            rd += q_reads(L, c, k); mf += q_mfmas(c, k)
        if n in P.och:
            c = P.och[n]; b = o_breads(c)
            rd += [b[0]] + o_wreads(P.oslot[c], 0, (0,)) + [b[1]] + o_wreads(P.oslot[c], 0, (1,))
            mf += o_mfmas(c)
        return rd, mf
    pr, pm = projparts(0)
    assert not pm
    a("s_barrier")
    emit_tick(a, q_mfmas(19, 1), spread(k_reads(0), 6))
    st.stamp(a, 1)
    pad(a, o, 1)
    a(f"s_cmp_lg_u32 s{sWAVE}, 0")
    a("s_cbranch_scc1 L_noann")
    a(f"s_lshl_b32 s{sT0}, s{sCL}, 4")
    a(f"s_lshl_b32 s{sT1}, s{sJ}, 2")
    a(f"s_add_u32 s{sT0}, s{sT0}, s{sT1}")
    a(f"s_add_u32 s{sT0}, s{sT0}, s{sHH}")
    a(f"v_mov_b32 v{vM0}, 1")
    a("s_mov_b64 exec, 1")
    a(f"buffer_store_byte v{vM0}, v{vL0}, s[{sDBG}:{sDBG+3}], s{sT0} offen sc1")
    a("s_mov_b64 exec, -1")
    a.label("L_noann")
    a("s_nop 7")
    cv = q_convert_ops(AQ[0], True)
    qk = qk_mfmas(0)
    a("s_waitcnt lgkmcnt(0)")
    for t in cv[:24]: a(t)
    for dt in range(4):
        ms = [qk[2*dt], qk[8+2*dt], qk[2*dt+1], qk[8+2*dt+1]]
        a("s_nop 1")
        emit_tick(a, ms, spread(cv[24*(dt+1):24*(dt+2)], 4) if dt < 3 else [])
    pr, pm = projparts(1)
    a("s_barrier")
    val = init_ops(vS[0])
    if pm: emit_tick(a, pm, spread(val[20:], len(pm)), pre=pr + k_reads(1 % L.NK) + val[:20])
    else: emit_tick(a, [], [], pre=k_reads(1 % L.NK) + val)
    a("s_waitcnt lgkmcnt(0)")
    for i in range(15):
        cur, nxt = i & 1, (i + 1) & 1
        n = 2 * i + 2
        pr, pm = projparts(n)
        a("s_barrier")
        if i == 8: st.stamp(a, 2)
        ng = 16 + len(pm)
        fs = [spread(pr + v_reads(i % L.NV), ng - 2)]
        sm = softmax_ops(vS[cur], 0, NA)
        if i == 8:
            assert not pm
            fin = sum((finalize_ops(dt, 240, 208, False, True) for dt in range(4)), [])
            fs.append(spread(fin, ng - 3, start=0)); fs.append(spread(sm, ng))
        else:
            fs.append(spread(sm, ng))
        emit_tick(a, qk_mfmas(i + 1) + pm, merge(*fs))
        if i == 8: a(f"s_add_u32 s{sOoff}, s{sOoff}, 24576")
        if n == o.get("nflag1", 19):
            a("s_waitcnt vmcnt(0)")
            flag_store(a, sF1, 1)
        a("s_waitcnt lgkmcnt(0)")
        n = 2 * i + 3
        pr, pm = projparts(n)
        a("s_barrier")
        if i == 14:
            a(f"s_add_u32 s{sT0}, s{sHH}, 3")
            a(f"s_and_b32 s{sT0}, s{sT0}, 3")
            a(f"s_sub_u32 s{sT0}, s{sT0}, s{sHH}")
            a(f"s_mul_i32 s{sT0}, s{sT0}, 49152")
            a(f"s_add_u32 s{sT0}, s{sT0}, s{sOoff}")
            a(f"s_sub_u32 s{sT0}, s{sT0}, 24576")
            for cc in range(4):
                for ks in range(2):
                    a(f"buffer_load_dwordx4 {R('a', aPB+(cc*2+ks)*4, 4)}, v{vL16}, s[{sWS}:{sWS+3}], s{sT0} offen offset:{ks*1024} sc1")
                if cc < 3: a(f"s_add_u32 s{sT0}, s{sT0}, 6144")
        ng = 16 + len(pm)
        kr = k_reads((i + 2) % L.NK) if i < 14 else []
        fs = [spread(pr + kr, ng - 2 if kr else 12)] if (pr or kr) else []
        fs.append(spread(softmax_ops(vS[cur], NA, 32), 10))
        if i == 6:
            assert not pm
            fs.append(spread(q_convert_ops(AQ[1], False), ng, start=1)); fs.append(spread(max_ops(vS[nxt]), ng, start=10))
        elif i == 7:
            io = init_ops(vS[nxt])
            fs.append(spread(io[:16], 10, start=3)); fs.append(spread(io[16:] + lfin_ops(), ng, start=10))
        elif i == 14:
            fs.append(spread(max_ops(vS[nxt]), 16, start=9))
        else:
            fs.append(spread(max_ops(vS[nxt]), ng, start=10))
        if i == 14:
            emit_tick(a, pv_mfmas(i), merge(*fs))
            rare_check(a, nxt)
            sm = softmax_ops(vS[nxt], 0, 32) + lfin_ops()[:-2]
            a("s_waitcnt lgkmcnt(0)")
            if pm: emit_tick(a, pm, spread(sm, len(pm)))
            else:
                for x in sm: a(x if isinstance(x, str) else x[0])
        else:
            emit_tick(a, pv_mfmas(i) + pm, merge(*fs))
            if i != 7: rare_check(a, nxt)
        if n == o.get("nflag1", 19):
            a("s_waitcnt vmcnt(0)")
            flag_store(a, sF1, 1)
        a("s_waitcnt lgkmcnt(0)")

def gen_tail(a, P, o, st):
    L = P.L
    c0 = P.NOM
    vPK = 96
    BF = (vBF, 32)
    a(f"v_add_u32 v{aK}, 61440, v{aO}")
    a(f"v_add_u32 v{aK+1}, 122880, v{aO}")
    a("s_barrier")
    st.stamp(a, 3)
    pad(a, o, 3)
    vr_ = v_reads(L.v15, True)
    def creads(c):
        buf = (c - c0) & 1
        r = o_wreads(P.oslot[c], buf)
        if c < 12: r = o_breads(c, BF[buf]) + r
        return r
    fin = [finalize_ops(dt, 64 + 16 * (dt & 1), vPK, True, False) for dt in range(4)]
    fl = spread(vr_[10:] + creads(c0), 12)
    fl = merge(fl, spread(fin[0], 12, start=8), spread(fin[1], 16, start=12))
    emit_tick(a, pv_mfmas(15, True), fl, pre=vr_[:10])
    for t in fin[2]: a(t)
    for t in fin[3]: a(t)
    st.stamp(a, 4)
    a("s_waitcnt lgkmcnt(0)")
    def chunk(c, nextreads, extra=()):
        buf = (c - c0) & 1
        if c < 12: m = o_mfmas(c, buf, 'v', BF[buf])
        elif c < 16: m = o_mfmas(c, buf, 'a', aPB + 8 * (c - 12))
        elif c < 20: m = o_mfmas(c, buf, 'v', vPK + 8 * (c - 16))
        else: m = o_mfmas(c, buf, 'a', aPB + 8 * (c - 20))
        fl = spread(nextreads, 9) if nextreads else [[]]
        if extra: fl = merge(fl, spread(list(extra), 10))
        emit_tick(a, m, fl)
        a("s_waitcnt lgkmcnt(0)")
    vPA, vOUT = 3, 6
    ex = []
    for i in range(3):
        ex += [f"v_add_u32 v{vM0}, {64*i}, v0",
               f"v_lshrrev_b32 v{vM1}, 3, v{vM0}",
               f"v_and_b32 v{vM0}, 7, v{vM0}",
               f"v_lshlrev_b32 v{vPA+i}, 9, v{vM1}",
               f"v_lshl_add_u32 v{vPA+i}, v{vM0}, 4, v{vPA+i}",
               f"v_mul_u32_u24 v{vOUT+i}, 2560, v{vM0}",
               f"v_lshl_add_u32 v{vOUT+i}, v{vM1}, 4, v{vOUT+i}"]
    fat = min(19, c0 + o.get("flagafter", 3) - 1)
    for c in range(c0, 20):
        k = c - c0
        a("s_barrier")
        if c == 12 and c <= fat: a("s_waitcnt vmcnt(8)")
        chunk(c, creads(c + 1), ex[7 * k:7 * k + 7] if k < 3 else ())
        if c == fat:
            a("s_waitcnt vmcnt(0)")
            flag_store(a, sF1, 2)
            st.stamp(a, 5)
    a(f"s_lshl_b32 s{sT2}, s{sHH}, 1")
    a(f"s_mul_i32 s{sT2}, s{sT2}, 24576")
    a(f"s_sub_u32 s{sT2}, s{sOoff}, s{sT2}")
    wave_poll(a, sF1, 2, "1")
    st.stamp(a, 6)
    for p in range(3):
        a(f"s_add_u32 s{sT0}, s{sHH}, {p+1}")
        a(f"s_and_b32 s{sT0}, s{sT0}, 3")
        a(f"s_mul_i32 s{sT0}, s{sT0}, 49152")
        a(f"s_add_u32 s{sT0}, s{sT0}, s{sT2}")
        for cc in range(4):
            for ks in range(2):
                a(f"buffer_load_dwordx4 {R('a', aPB+(p*8+cc*2+ks)*4, 4)}, v{vL16}, s[{sWS}:{sWS+3}], s{sT0} offen offset:{ks*1024} sc1")
            if cc < 3: a(f"s_add_u32 s{sT0}, s{sT0}, 6144")
    a("s_barrier")
    for c in range(20, 32):
        a(f"s_waitcnt vmcnt({22 - 2 * (c - 20)})")
        chunk(c, creads(c + 1) if c < 31 else [])
    st.stamp(a, 7)
    a("s_nop 4")
    a(f"s_add_u32 s{sT0}, s{sPoff}, 4096")
    a(f"s_add_u32 s{sT1}, s{sPoff}, 8192")
    for ct in range(5):
        b = vOA + 16 * ct
        for m in range(8): a(f"v_cvt_pk_bf16_f32 v{64+8*ct+m}, v{b+2*m}, v{b+2*m+1}")
        for u in range(2):
            f = 2 * ct + u
            a(f"buffer_store_dwordx4 {R('v', 64+4*f, 4)}, v{vL16}, s[{sWS}:{sWS+3}], s{(sPoff, sT0, sT1)[f>>2]} offen offset:{(f&3)*1024} sc1")
    a(f"s_mul_i32 s{sT2}, s{sJ}, {30720-128}")
    a(f"s_sub_u32 s{sT2}, s{sPoff}, s{sT2}")
    a(f"s_mul_i32 s{sT3}, s{sB}, 96")
    a(f"s_lshl_b32 s{sT0}, s{sWAVE}, 5")
    a(f"s_add_u32 s{sT3}, s{sT3}, s{sT0}")
    a(f"s_lshl_b32 s{sT0}, s{sJ}, 3")
    a(f"s_add_u32 s{sT3}, s{sT3}, s{sT0}")
    a(f"s_mul_i32 s{sT3}, s{sT3}, 2560")
    a(f"s_mul_i32 s{sT0}, s{sBLK}, 1280")
    a(f"s_add_u32 s{sT3}, s{sT3}, s{sT0}")
    a(f"s_mul_i32 s{sT0}, s{sHH}, 320")
    a(f"s_add_u32 s{sT3}, s{sT3}, s{sT0}")
    a("s_waitcnt vmcnt(0)")
    flag_store(a, sF2, 1)
    st.stamp(a, 8)
    wave_poll(a, sF2, 1, "2")
    st.stamp(a, 9)
    for i in range(3):
        if i == 2: a("s_mov_b32 exec_hi, 0")
        for j in range(4):
            a(f"s_add_u32 s{sT0}, s{sT2}, {j*30720}")
            a(f"buffer_load_dwordx4 {R('v', 128+16*i+4*j, 4)}, v{vPA+i}, s[{sWS}:{sWS+3}], s{sT0} offen sc1")
    a("s_mov_b64 exec, -1")
    a(f"s_mov_b32 s{sT1}, 0xffff0000")
    for i in range(3):
        a(f"s_waitcnt vmcnt({8 - 3 * i})")
        if i == 2: a("s_mov_b32 exec_hi, 0")
        for d in range(4):
            for j in range(4):
                a(f"v_lshlrev_b32 v{64+j}, 16, v{128+16*i+4*j+d}")
                a(f"v_and_b32 v{68+j}, s{sT1}, v{128+16*i+4*j+d}")
            a("v_add_f32 v64, v64, v65"); a("v_add_f32 v66, v66, v67"); a("v_add_f32 v68, v68, v69"); a("v_add_f32 v70, v70, v71")
            a("v_add_f32 v64, v64, v66"); a("v_add_f32 v68, v68, v70")
            a(f"v_cvt_pk_bf16_f32 v{72+4*i+d}, v64, v68")
        a(f"buffer_store_dwordx4 {R('v', 72+4*i, 4)}, v{vOUT+i}, s[{sOUT}:{sOUT+3}], s{sT3} offen{o.get('outpol','')}")
    a("s_mov_b64 exec, -1")

def gen_kernel(a, o):
    st = Stamps(o.get("stamps", 0))
    P = Plan(o); L = P.L
    k = NAME + "_kernel"
    kernel_begin(a, k)
    a("s_cmp_ge_u32 s2, 256")
    a("s_cbranch_scc1 L_exit")
    st.stamp(a, 0)
    if o.get("pad"): a("s_memrealtime s[84:85]")
    a(f"s_and_b32 s{sT0}, s2, 7")
    a(f"s_lshr_b32 s{sBLK}, s{sT0}, 2")
    a(f"s_mul_i32 s{sT1}, s{sBLK}, 40")
    a(f"s_add_u32 s{sEX}, s0, s{sT1}")
    a(f"s_addc_u32 s{sEX+1}, s1, 0")
    a(f"s_load_dwordx8 s[{sLD}:{sLD+7}], s[{sEX}:{sEX+1}], 0")
    a(f"s_load_dwordx2 s[{sWO}:{sWO+1}], s[{sEX}:{sEX+1}], 32")
    a(f"s_load_dwordx2 s[{sOUT}:{sOUT+1}], s[0:1], 80")
    a(f"s_load_dwordx2 s[{sDBG}:{sDBG+1}], s[0:1], 88")
    a(f"s_load_dwordx2 s[{sWS}:{sWS+1}], s[0:1], 96")
    a(f"s_getpc_b64 s[{sPC}:{sPC+1}]")
    a("L_pc:")
    a(f"s_and_b32 s{sJ}, s{sT0}, 3")
    a(f"s_lshr_b32 s{sT0}, s2, 3")
    a(f"s_and_b32 s{sB}, s{sT0}, 7")
    a(f"s_lshr_b32 s{sHH}, s{sT0}, 3")
    a(f"s_mov_b32 s{sT0}, L_exit-L_pc")
    a("v_lshrrev_b32 v1, 6, v0")
    a("v_lshlrev_b32 v2, 7, v0")
    a(f"v_readfirstlane_b32 s{sWAVE}, v1")
    a("v_and_b32 v0, 63, v0")
    a(f"s_cmp_eq_u32 s{sWAVE}, 3")
    a("s_cbranch_scc1 L_nopf3")
    for rep in range(3):
        if rep: a("v_add_u32 v2, 24576, v2")
        a(f"v_cmp_gt_u32 vcc, s{sT0}, v2")
        a(f"s_and_saveexec_b64 s[{sRET}:{sRET+1}], vcc")
        a(f"s_cbranch_execz L_nopf{rep}")
        a(f"global_load_dword v47, v2, s[{sPC}:{sPC+1}]")
        a(f"L_nopf{rep}:")
        a(f"s_mov_b64 exec, s[{sRET}:{sRET+1}]")
    a("L_nopf3:")
    a(f"s_lshl_b32 s{sCL}, s{sBLK}, 3")
    a(f"s_add_u32 s{sCL}, s{sCL}, s{sB}")
    a(f"s_lshl_b32 s{sT1}, s{sJ}, 3")
    a(f"s_lshl_b32 s{sT0}, s{sHH}, 1")
    a(f"s_add_u32 s{sT1}, s{sT1}, s{sT0}")
    a(f"s_lshl_b32 s{sT2}, s{sB}, 5")
    a(f"s_add_u32 s{sT2}, s{sT2}, s{sT1}")
    a(f"s_lshl_b32 s{sT0}, s{sCL}, 2")
    a(f"s_add_u32 s{sF1}, s{sT0}, s{sJ}")
    a(f"s_lshl_b32 s{sF1}, s{sF1}, 7")
    a(f"s_add_u32 s{sF1}, s{sF1}, {WS_F1}")
    a(f"s_add_u32 s{sF2}, s{sT0}, s{sHH}")
    a(f"s_lshl_b32 s{sF2}, s{sF2}, 7")
    a(f"s_add_u32 s{sF2}, s{sF2}, {WS_F2}")
    a(f"s_cmp_lg_u32 s{sWAVE}, 3")
    a("s_cbranch_scc1 L_awave")
    vK, vV, vW, vX, vO, vB = 4, 8, 9, 13, 17, 22
    a("v_lshrrev_b32 v1, 3, v0")
    a("v_and_b32 v2, 7, v0")
    for p in range(2):
        a(f"v_add_u32 v3, {8*p}, v1")
        a("v_bfe_u32 v23, v3, 1, 3")
        a("v_xor_b32 v23, v23, v2")
        a("v_lshlrev_b32 v23, 4, v23")
        a("v_mul_u32_u24 v3, 1280, v3")
        a("v_add_u32 v23, v23, v3")
        a(f"v_subrev_u32 v{vX+p}, {p*1024}, v23")
        a(f"v_add_u32 v{vX+p+2}, {16*1280-2048}, v{vX+p}")
    a("v_lshrrev_b32 v1, 4, v0")
    a("v_and_b32 v2, 15, v0")
    a("v_lshlrev_b32 v3, 2, v1")
    a("v_xor_b32 v3, v3, v2")
    a("v_lshlrev_b32 v3, 4, v3")
    a(f"v_lshl_add_u32 v{vV}, v1, 8, v3")
    a(f"v_lshl_add_u32 v{vW}, v1, 13, v3")
    for p in range(1, 4): a(f"v_add_u32 v{vW+p}, {p*(4*8192-1024)}, v{vW}")
    a("v_xor_b32 v3, v1, v2")
    a("v_lshlrev_b32 v3, 4, v3")
    a(f"v_lshl_add_u32 v{vK}, v1, 8, v3")
    for p in range(1, 4): a(f"v_xor_b32 v{vK+p}, {p*64}, v{vK}")
    if o.get("rot", 1):
        a(f"s_mul_i32 s{sT0}, s{sB}, 5")
        a(f"s_lshr_b32 s{sT0}, s{sT0}, 2")
        a(f"s_mul_i32 s{sT3}, s{sHH}, 5")
        a(f"s_lshr_b32 s{sT3}, s{sT3}, 1")
        a(f"s_add_u32 s{sT0}, s{sT0}, s{sT3}")
        a(f"s_cmp_ge_u32 s{sT0}, 10")
        a(f"s_cselect_b32 s{sT3}, 10, 0")
        a(f"s_sub_u32 s{sT0}, s{sT0}, s{sT3}")
    else:
        a(f"s_mov_b32 s{sT0}, 0")
    a(f"s_lshl_b32 s{sWg}, s{sT1}, 8")
    a(f"s_add_u32 s{sWend}, s{sWg}, {640*8192}")
    a(f"s_lshl_b32 s{sT3}, s{sT0}, 19")
    a(f"s_add_u32 s{sWg}, s{sWg}, s{sT3}")
    a(f"s_mul_i32 s{sXg}, s{sB}, 122880")
    a(f"s_add_u32 s{sXend}, s{sXg}, 1280")
    a(f"s_lshl_b32 s{sT3}, s{sT0}, 7")
    a(f"s_add_u32 s{sXg}, s{sXg}, s{sT3}")
    a(f"s_lshl_b32 s{sKg}, s{sT2}, 17")
    a(f"s_mov_b32 s{sVg}, s{sKg}")
    a("s_waitcnt lgkmcnt(0)")
    srd(a, sX, sLD, sLD + 1, 983040)
    srd(a, sW, sLD + 6, sLD + 7, 5242880)
    srd(a, sK, sLD + 2, sLD + 3, 0x2000000)
    srd(a, sV, sLD + 4, sLD + 5, 0x2000000)
    ed = o.get("ed", "E")
    if ed == "ED":
        a(f"s_bitcmp1_b32 s{sB}, 0")
        a("s_cbranch_scc1 L_schedD")
    a("s_branch L_schedE")
    nod = o.get("nodma", "")
    def routine(name, srdn, vbase, nv, counts, sg, gstep, pol, tail):
        a.label(f"L_iss{name}")
        for g, n in enumerate(counts):
            so = sg
            if g > 0:
                a(f"s_add_u32 m0, m0, 4096")
                a(f"s_add_u32 s{sT0}, s{sg}, {gstep*g}")
                so = sT0
            for p in range(n):
                if name not in nod:
                    a(f"buffer_load_dwordx4 v{vbase + (p if nv == 4 else 0)}, s[{srdn}:{srdn+3}], s{so} offen offset:{p*1024}{pol} lds")
        tail()
        a(f"s_setpc_b64 s[{sRET}:{sRET+1}]")
    def wrap(sg, send, span):
        a(f"s_cmp_ge_u32 s{sg}, s{send}")
        a(f"s_cselect_b32 s{sT0}, {span}, 0")
        a(f"s_sub_u32 s{sg}, s{sg}, s{sT0}")
    def tailW():
        a(f"s_add_u32 s{sWg}, s{sWg}, {32*8192}"); wrap(sWg, sWend, 640 * 8192)
    def tailX():
        a(f"s_add_u32 s{sXg}, s{sXg}, 128"); wrap(sXg, sXend, 1280)
    routine("X", sX, vX, 4, (4, 4, 4), sXg, 32 * 1280, o.get("xpol", ""), tailX)
    routine("W", sW, vW, 4, (4, 4), sWg, 16 * 8192, o.get("wpol", ""), tailW)
    routine("K", sK, vK, 4, (4, 4, 4, 4), sKg, 4096, o.get("kvpol", " nt"), lambda: a(f"s_add_u32 s{sKg}, s{sKg}, 16384"))
    routine("V", sV, vV, 1, (4, 4, 4, 4), sVg, 4096, o.get("kvpol", " nt"), lambda: a(f"s_add_u32 s{sVg}, s{sVg}, 16384"))
    a.label("L_late_setup")
    srd(a, sWS, sWS, sWS + 1, 0x10000000)
    srd(a, sWO, sWO, sWO + 1, 5242880)
    srd(a, sDBG, sDBG, sDBG + 1, 256)
    for p in range(5):
        a(f"v_add_u32 v1, {64*p}, v0")
        a("v_mul_u32_u24 v2, 3277, v1")
        a("v_lshrrev_b32 v2, 16, v2")
        a("v_mul_u32_u24 v3, 20, v2")
        a("v_sub_u32 v3, v1, v3")
        a("v_mul_u32_u24 v2, 1280, v2")
        a("v_lshl_add_u32 v2, v3, 4, v2")
        a(f"v_subrev_u32 v{vO+p}, {(p*1024) if p < 4 else 0}, v2")
    a(f"v_lshlrev_b32 v{vB}, 4, v0")
    a(f"v_add_u32 v29, {L.XB}, v{vB}")
    a("v_and_b32 v26, 3, v0")
    a("v_lshlrev_b32 v26, 2, v26")
    a("v_and_b32 v27, 15, v0")
    a("v_lshlrev_b32 v27, 2, v27")
    a("v_lshlrev_b32 v23, 7, v0")
    a(f"s_mov_b32 s{sCNT}, 0x01010101")
    a(f"s_mul_i32 s{sOg}, s{sJ}, {1024*1280}")
    a(f"s_lshr_b32 s{sT3}, s2, 3")
    a(f"s_mul_i32 s{sT3}, s{sT3}, 40960")
    a(f"s_add_u32 s{sT3}, s{sT3}, s{sOg}")
    a(f"s_mul_i32 s{sT0}, s{sHH}, 320")
    a(f"s_add_u32 s{sOg}, s{sOg}, s{sT0}")
    a(f"s_add_u32 s{sOend}, s{sOg}, {1024*1280}")
    a(f"s_mul_i32 s{sT0}, s{sHH}, {256*1280}")
    a(f"s_add_u32 s{sOg}, s{sOg}, s{sT0}")
    a(f"s_lshl_b32 s{sT0}, s{sCL}, 5")
    a(f"s_lshl_b32 s{sT1}, s{sJ}, 3")
    a(f"s_add_u32 s{sT0}, s{sT0}, s{sT1}")
    a(f"s_mul_i32 s{sBg}, s{sT0}, 24576")
    a(f"s_add_u32 s{sBend}, s{sBg}, {8*24576}")
    a(f"s_add_u32 s{sT0}, s{sHH}, 1")
    a(f"s_and_b32 s{sT0}, s{sT0}, 3")
    a(f"s_mul_i32 s{sT0}, s{sT0}, 49152")
    a(f"s_add_u32 s{sBg}, s{sBg}, s{sT0}")
    a(f"s_lshl_b32 s{sCL}, s{sCL}, 4")
    a("v_lshrrev_b32 v2, 3, v0")
    a("v_lshlrev_b32 v2, 13, v2")
    a("v_bfe_u32 v1, v0, 1, 2")
    a("v_lshl_add_u32 v2, v1, 9, v2")
    a("v_and_b32 v1, 1, v0")
    a("v_lshl_add_u32 v2, v1, 7, v2")
    a(f"s_lshr_b32 s{sT2}, s2, 3")
    a(f"s_mul_i32 s{sT2}, s{sT2}, {20*8192}")
    a(f"s_lshl_b32 s{sT0}, s{sJ}, 11")
    a(f"s_add_u32 s{sT2}, s{sT2}, s{sT0}")
    a(f"s_add_u32 s{sT2}, s{sT2}, 256")
    if st.on:
        a("v_mov_b32 v30, 0"); a("v_mov_b32 v31, 0"); a("v_mov_b32 v3, 0")
    a(f"s_setpc_b64 s[{sRET}:{sRET+1}]")
    a.label("L_schedE")
    emit_loader_schedule(a, P, "E", st, o)
    if ed == "ED":
        a("s_branch L_loader_end")
        a.label("L_schedD")
        emit_loader_schedule(a, P, "D", st, o)
        a.label("L_loader_end")
    if st.on:
        a(f"s_lshl_b32 s{sT0}, s2, 10")
        a(f"s_add_u32 s{sT0}, s{sT0}, {STAMP + 0x100000}")
        a("v_lshlrev_b32 v29, 2, v0")
        for i, r in enumerate((30, 31, 3)):
            a(f"buffer_store_dword v{r}, v29, s[{sWS}:{sWS+3}], s{sT0} offen offset:{256*i}")
    a("s_endpgm")
    routine("B", sWS, vB, 1, (4, 2), sBg, 4096, " sc1", lambda: a(f"s_add_u32 s{sBg}, s{sBg}, 6144"))
    a.label("L_issO")
    pol = o.get("wopol", "")
    for ks in range(2):
        so = sOg
        if ks:
            a("s_add_u32 m0, m0, 1024")
            a(f"s_add_u32 s{sT0}, s{sOg}, {16*1280}"); so = sT0
        for p in range(4):
            if "O" not in nod: a(f"buffer_load_dwordx4 v{vO+p}, s[{sWO}:{sWO+3}], s{so} offen offset:{p*1024}{pol} lds")
        a("s_add_u32 m0, m0, 4096")
        a("s_nop 0")
        if "O" not in nod: a(f"buffer_load_dwordx4 v{vO+4}, s[{sWO}:{sWO+3}], s{so} offen{pol} lds")
    a(f"s_add_u32 s{sOg}, s{sOg}, {32*1280}")
    a(f"s_setpc_b64 s[{sRET}:{sRET+1}]")
    a.label("L_nextO")
    a(f"s_add_u32 s{sOg}, s{sOg}, {128*1280}")
    wrap(sOg, sOend, 1024 * 1280)
    a(f"s_setpc_b64 s[{sRET}:{sRET+1}]")
    a.label("L_nextB")
    a(f"s_add_u32 s{sBg}, s{sBg}, 24576")
    wrap(sBg, sBend, 8 * 24576)
    a(f"s_setpc_b64 s[{sRET}:{sRET+1}]")
    for nm, ld, cmp_, msk in (("G", f"buffer_load_dword v25, v26, s[{sDBG}:{sDBG+3}], s{sCL} offen sc1", f"v_cmp_ne_u32 vcc, s{sCNT}, v25", "15"),
                              ("F", f"buffer_load_dword v24, v27, s[{sWS}:{sWS+3}], s{sF1} offen sc1", "v_cmp_gt_u32 vcc, 1, v24", f"s{sT1}")):
        a.label(f"L_spin{nm}")
        a(f"s_mov_b32 s{sT0}, 0")
        a.label(f"L_spinl{nm}")
        a(ld)
        a(f"s_add_u32 s{sT0}, s{sT0}, 1")
        a(f"s_cmp_ge_u32 s{sT0}, {SPIN}")
        a(f"s_cbranch_scc1 L_spind{nm}")
        a("s_waitcnt vmcnt(0)")
        a(cmp_)
        a(f"s_and_b32 vcc_lo, vcc_lo, {msk}")
        a(f"s_cbranch_scc1 L_spinl{nm}")
        a.label(f"L_spind{nm}")
        a("s_waitcnt vmcnt(0)")
        a(f"s_setpc_b64 s[{sRET}:{sRET+1}]")
    a.label("L_awave")
    a(f"s_lshl_b32 s{sT0}, s{sWAVE}, 2")
    a(f"s_lshl_b32 s{sT3}, s{sHH}, 4")
    a(f"s_add_u32 s{sF1}, s{sF1}, s{sT3}")
    a(f"s_add_u32 s{sF1}, s{sF1}, s{sT0}")
    a(f"s_lshl_b32 s{sT3}, s{sJ}, 4")
    a(f"s_add_u32 s{sF2}, s{sF2}, s{sT3}")
    a(f"s_add_u32 s{sF2}, s{sF2}, s{sT0}")
    a("s_waitcnt lgkmcnt(0)")
    srd(a, sWS, sWS, sWS + 1, 0x10000000)
    srd(a, sOUT, sOUT, sOUT + 1, 8 * 96 * 1280 * 2)
    srd(a, sDBG, sDBG, sDBG + 1, 256)
    flag_store(a, sF1, 0)
    flag_store(a, sF2, 0)
    a(f"s_lshl_b32 s{sT0}, s{sBLK}, 8")
    a(f"s_add_u32 s{sT0}, s{sT0}, s{sT2}")
    a(f"s_mul_i32 s{sOoff}, s{sT0}, 24576")
    a(f"s_lshl_b32 s{sT0}, s{sWAVE}, 11")
    a(f"s_add_u32 s{sOoff}, s{sOoff}, s{sT0}")
    a(f"s_lshl_b32 s{sT0}, s{sCL}, 2")
    a(f"s_add_u32 s{sT0}, s{sT0}, s{sHH}")
    a(f"s_lshl_b32 s{sT0}, s{sT0}, 2")
    a(f"s_add_u32 s{sT0}, s{sT0}, s{sJ}")
    a(f"s_mul_i32 s{sPoff}, s{sT0}, 30720")
    a(f"s_mul_i32 s{sT0}, s{sWAVE}, 10240")
    a(f"s_add_u32 s{sPoff}, s{sPoff}, s{sT0}")
    a(f"s_add_u32 s{sPoff}, s{sPoff}, {WS_P}")
    a(f"s_mov_b32 s{sTH}, {THRESH}")
    a(f"s_mov_b32 s{sQS}, {QSCALE}")
    a(f"s_mov_b32 s{sQS+1}, {QSCALE}")
    a(f"v_mov_b32 v{vL0}, 0")
    a(f"v_mov_b32 v{vL1}, 0")
    a(f"v_lshlrev_b32 v{vL16}, 4, v0")
    a("v_and_b32 v64, 31, v0")
    a("v_lshrrev_b32 v65, 5, v0")
    a("v_and_b32 v66, 15, v64")
    a("v_xor_b32 v66, v66, v65")
    a("v_lshlrev_b32 v66, 4, v66")
    a("v_lshl_add_u32 v66, v64, 8, v66")
    a(f"v_add_u32 v66, {L.KB}, v66")
    for ks in range(8): a(f"v_xor_b32 v{aK+ks}, {ks*32}, v66")
    a("v_bfe_u32 v66, v64, 1, 3")
    a("v_xor_b32 v66, v66, v65")
    a("v_lshlrev_b32 v66, 4, v66")
    a("v_lshl_add_u32 v66, v64, 7, v66")
    a(f"s_lshl_b32 s{sT0}, s{sWAVE}, 12")
    a(f"s_add_u32 s{sT0}, s{sT0}, {L.XB}")
    a(f"v_add_u32 v66, s{sT0}, v66")
    for ks in range(4): a(f"v_xor_b32 v{aX+ks}, {ks*32}, v66")
    a("v_bfe_u32 v67, v0, 2, 2")
    a("v_and_b32 v68, 1, v0")
    a("v_lshlrev_b32 v68, 4, v68")
    a("v_bfe_u32 v69, v0, 1, 1")
    a("v_lshl_add_u32 v68, v69, 3, v68")
    a("v_bfe_u32 v69, v0, 4, 1")
    a("v_lshl_add_u32 v68, v69, 5, v68")
    a("v_lshl_add_u32 v69, v65, 2, v67")
    a("v_lshl_add_u32 v69, v69, 8, v68")
    a("v_lshl_add_u32 v69, v67, 6, v69")
    a(f"v_add_u32 v69, {L.VB}, v69")
    for dt in range(4): a(f"v_xor_b32 v{aV+dt}, {dt*64}, v69")
    a("v_lshl_add_u32 v70, v65, 3, v67")
    a("v_lshl_add_u32 v69, v70, 8, v68")
    a("v_lshl_add_u32 v69, v67, 6, v69")
    for dt in range(4): a(f"v_xor_b32 v{aW+dt}, {dt*64}, v69")
    a("v_mul_u32_u24 v70, 320, v70")
    a(f"v_add_u32 v{aO}, v70, v68")
    a(f"s_lshl_b32 s{sT0}, s{sWAVE}, 11")
    a(f"s_add_u32 s{sT0}, s{sT0}, {L.XB}")
    a(f"v_add_u32 v{aB}, s{sT0}, v{vL16}")
    a("s_waitcnt vmcnt(0)")
    for c in range(20):
        a("s_barrier")
        if c == 0: pad(a, o, 0)
        if c == 0:
            for r in q_reads(L, 0, 0): a(r)
        else:
            emit_tick(a, q_mfmas(c - 1, (c - 1) & 1), spread(q_reads(L, c, c & 1), 6))
        a("s_waitcnt lgkmcnt(0)")
    gen_middle(a, P, o, st)
    gen_tail(a, P, o, st)
    pad(a, o, 10)
    if st.on:
        a("s_waitcnt vmcnt(0)")
        st.stamp(a, 10)
        a(f"s_cmp_lg_u32 s{sWAVE}, 0")
        a("s_cbranch_scc1 L_exit")
        st.flush(a, range(11))
    a("s_endpgm")
    rare(a, 0)
    rare(a, 1)
    rescaleO(a)
    a.label("L_exit")
    a("s_endpgm")
    return P

def generate(fname, **o):
    a = Asm()
    a(HEADER_COMMENT.rstrip("\n"))
    a(f"; @launch grid=(256,1,1) block=(256,1,1) lds={LDSSZ}")
    a('.amdgcn_target "amdgcn-amd-amdhsa--gfx950"')
    P = gen_kernel(a, o)
    kernel_desc(a, NAME + "_kernel", 512, 102, 256)
    t = a.text()
    n = hazard.check(t)
    assert n == 0, f"{n} hazards"
    i0, i1 = t.index("L_schedE:"), t.index("L_awave:")
    nb_l = t[i0:i1].count("s_barrier"); nb_a = t[i1:].count("s_barrier")
    assert nb_a == P.NT and nb_l == P.NT * (2 if o.get("ed", "E") == "ED" else 1), (nb_a, nb_l, P.NT)
    open(fname, "w").write(t)
    return P

if __name__ == "__main__":
    P = generate("v3.s")
    generate("v3_st.s", stamps=1, trace2=1)
    s, n = P.schedule("E")
    for t, x in enumerate(s): print(t, x)
    print(P.oslot, P.NT, P.L.__dict__)
```

```python
import gen3, sys
K, V = "K", "V"
preh = {(K,0):3,(K,1):7,(V,0):11,(K,2):15,(V,1):19}
c32 = dict(NK=3, NV=2, parK=0, parH=1, pre=preh, quiet=[19], natf=1, nflag1=20, v15gap=0, olate=1, f2d=3, v15slot=3, touch=[33,33,35,35,37], olist=[19,20,21,22,26,27,28,29])
gen3.generate("p_none.s", **c32)
gen3.generate("p_end70.s", pad=(10, 7000), **c32)
gen3.generate("p_v15_55.s", pad=(3, 5500), **c32)
gen3.generate("p_head25.s", pad=(1, 2500), **c32)
gen3.generate("p_first10.s", pad=(0, 1000), **c32)
gen3.generate("p_end50.s", pad=(10, 5000), **c32)
gen3.generate("p_end110.s", pad=(10, 11000), **c32)
gen3.generate("p_end45.s", pad=(10, 4500), **c32)
gen3.generate("p_end40.s", pad=(10, 4000), **c32)
gen3.generate("p_w0.s", pad=(10, 7000, 0, 255), **c32)
gen3.generate("p_w255.s", pad=(10, 7000, 255, 255), **c32)
gen3.generate("p_w248.s", pad=(10, 7000, 248, 255), **c32)
gen3.generate("p_w3.s", pad=(10, 7000, 3, 255), **c32)
gen3.generate("p_x5.s", pad=(10, 7000, 5, 7), **c32)
gen3.generate("p_outsc1.s", pad=(10, 7000), outpol=" sc1", **c32)
```

```python
import sys, struct, math
from asmlib import *
import hazard
from gen2 import (MF, WS_O, WS_P, WS_F1, WS_F2, STAMP, QSCALE, THRESH, SPIN, srd, spread, merge, emit_tick, R,
                  sX, sK, sV, sW, sWS, sWO, sOUT, sDBG, sWAVE, sB, sHH, sJ, sBLK, sT0, sT1, sT2, sT3, sCL, sRET, sCNT, sF1, sF2,
                  sST, sLD, sPC, sEX, Stamps)

LDSSZ = 163840
sWg, sWend, sXg, sXend, sKg, sVg, sOg, sOend, sBg, sBend, sL = 50, 51, 52, 53, 54, 55, 56, 57, 58, 59, 60
sOoff, sTH, sQS, sPoff = 50, 51, 52, 54

aK, aV, aW, aX, aO, aB = 1, 9, 13, 17, 21, 22
vL16, vL0, vL1, vM0, vM1 = 23, 24, 25, 26, 27
vT = 28
vR = 30
vP, vNEG, vS = 32, 48, (64, 96)
vQA = 128
WF = (('v', 192), ('a', 96))
XF = (224, 232)
vOA = 128
OF = (('v', 208), ('a', 64))
vBF = 248
aPB = 128
AO, AQ, AKF, AVF = 0, (64, 96), 128, 192

class Layout:
    def __init__(self, o):
        self.NK, self.NV = o.get("NK", 2), o.get("NV", 3)
        self.PSZ = LDSSZ - 24576 - 16384 * (self.NK + self.NV)
        self.PB = 0
        self.VB = self.PSZ
        self.KB = self.VB + 16384 * self.NV
        self.XB = self.KB + 16384 * self.NK
        self.v15 = o.get("v15slot", 15 % self.NV)
        self.NW = self.PSZ // 8192
        self.NO = self.PSZ // 10240
        assert self.KB % 256 == 0

def softmax_ops(S, lo, hi):
    ops = []; pend = []
    for j in range(lo, hi, 2):
        ops.append((f"v_exp_f32 v{S+j}, v{S+j}", 8))
        ops.append((f"v_exp_f32 v{S+j+1}, v{S+j+1}", 8))
        ops += pend
        pend = [(f"v_add_f32 v{vL0}, v{vL0}, v{S+j}", 4), (f"v_add_f32 v{vL1}, v{vL1}, v{S+j+1}", 4),
                (f"v_cvt_pk_bf16_f32 v{vP+j//2}, v{S+j}, v{S+j+1}", 4)]
    if pend: ops.append(("s_nop 0", 4))
    return ops + pend

def max_ops(S):
    ops = []
    for sub, m in ((0, vM0), (1, vM1)):
        b = S + 16 * sub
        ops.append(f"v_max3_f32 v{m}, v{b}, v{b+1}, v{b+2}")
        for j in range(3, 15, 2): ops.append(f"v_max3_f32 v{m}, v{m}, v{b+j}, v{b+j+1}")
    ops.append(f"v_max3_f32 v{vM0}, v{vM0}, v{S+15}, v{S+31}")
    ops.append(f"v_max_f32 v{vM0}, v{vM0}, v{vM1}")
    return ops

def crosshalf_ops(r, t, op):
    return [f"v_mov_b32 v{t}, v{r}", "s_nop 1", f"v_permlane32_swap_b32 v{r}, v{t}", "s_nop 0", f"{op} v{r}, v{r}, v{t}"]

def init_ops(S):
    return max_ops(S) + crosshalf_ops(vM0, vT, "v_max_f32") + [f"v_sub_f32 v{vNEG+j}, 0, v{vM0}" for j in range(16)] \
        + [f"v_sub_f32 v{S+j}, v{S+j}, v{vM0}" for j in range(32)]

def lfin_ops():
    return [f"v_add_f32 v{vL0}, v{vL0}, v{vL1}"] + crosshalf_ops(vL0, vT, "v_add_f32") + [f"v_rcp_f32 v{vR}, v{vL0}", f"v_mov_b32 v{vL1}, 0", f"v_mov_b32 v{vL0}, 0"]

def k_reads(slot):
    return [f"ds_read_b128 {R('a', AKF+(sub*8+ks)*4, 4)}, v{aK+ks} offset:{slot*16384+sub*8192}" for sub in range(2) for ks in range(8)]
def v_reads(slot, dtmajor=False):
    idx = [(ks, dt) for dt in range(4) for ks in range(4)] if dtmajor else [(ks, dt) for ks in range(4) for dt in range(4)]
    return [f"ds_read_b64_tr_b16 {R('a', AVF+(ks*4+dt)*4+2*t, 2)}, v{aV+dt} offset:{slot*16384+ks*4096+t*2048}" for ks, dt in idx for t in range(2)]
def qk_mfmas(i):
    S = vS[i & 1]; q = AQ[i >> 3]; c0 = "0" if i % 8 == 0 else R('v', vNEG, 16)
    r = []
    for sub in range(2):
        for ks in range(8):
            d = R('v', S + 16 * sub, 16)
            r.append(f"{MF} {d}, {R('a', AKF+(sub*8+ks)*4, 4)}, {R('a', q+4*ks, 4)}, {d if ks else c0}")
    return r
def pv_mfmas(i, dtmajor=False):
    idx = [(ks, dt) for dt in range(4) for ks in range(4)] if dtmajor else [(ks, dt) for ks in range(4) for dt in range(4)]
    return [f"{MF} {R('a', AO+16*dt, 16)}, {R('a', AVF+(ks*4+dt)*4, 4)}, {R('v', vP+4*ks, 4)}, {'0' if (ks == 0 and i % 8 == 0) else R('a', AO+16*dt, 16)}" for ks, dt in idx]

def q_reads(L, c, buf):
    wk, wb = WF[buf]; xb = XF[buf]
    ws = c % L.NW; xs = (c >> 1) & 1
    xr = [f"ds_read_b128 {R('v', xb+4*ks, 4)}, v{aX+2*(c&1)+ks} offset:{xs*12288}" for ks in range(2)]
    def wr(ks): return [f"ds_read_b64_tr_b16 {R(wk, wb+(ks*4+dt)*4+2*t, 2)}, v{aW+dt} offset:{ws*8192+ks*4096+t*1024}" for dt in range(4) for t in range(2)]
    return [xr[0]] + wr(0) + [xr[1]] + wr(1)
def q_mfmas(c, buf):
    wk, wb = WF[buf]; xb = XF[buf]
    return [f"{MF} {R('v', vQA+16*dt, 16)}, {R(wk, wb+(ks*4+dt)*4, 4)}, {R('v', xb+4*ks, 4)}, {'0' if (c % 20 == 0 and ks == 0) else R('v', vQA+16*dt, 16)}"
            for ks in range(2) for dt in range(4)]
def o_wreads(slot, buf=0, ks_list=(0, 1)):
    k, b = OF[buf]
    base = slot * 10240
    areg = (aO, aK, aK + 1)[base // 61440]
    base %= 61440
    return [f"ds_read_b64_tr_b16 {R(k, b+(ks*5+ct)*4+2*t, 2)}, v{areg} offset:{base+ks*5120+t*1280+ct*64}" for ks in ks_list for ct in range(5) for t in range(2)]
def o_breads(c, dst=vBF):
    return [f"ds_read_b128 {R('v', dst+4*ks, 4)}, v{aB} offset:{(c&3)*6144+ks*1024}" for ks in range(2)]
def o_mfmas(c, buf=0, bk='v', bb=vBF):
    k, b = OF[buf]
    return [f"{MF} {R('v', vOA+16*ct, 16)}, {R(k, b+(ks*5+ct)*4, 4)}, {R(bk, bb+4*ks, 4)}, {'0' if (c == 0 and ks == 0) else R('v', vOA+16*ct, 16)}"
            for ks in range(2) for ct in range(5)]

def q_convert_ops(dstq, pk):
    ops = []
    for dt in range(4):
        b = vQA + 16 * dt
        if pk: ops += [f"v_pk_mul_f32 v[{b+2*m}:{b+2*m+1}], v[{b+2*m}:{b+2*m+1}], s[{sQS}:{sQS+1}]" for m in range(8)]
        else: ops += [f"v_mul_f32 v{b+j}, s{sQS}, v{b+j}" for j in range(16)]
        ops += [f"v_cvt_pk_bf16_f32 v{b+m}, v{b+2*m}, v{b+2*m+1}" for m in range(8)]
        ops += [f"v_accvgpr_write_b32 a{dstq+8*dt+m}, v{b+m}" for m in range(8)]
    return ops

OPOL = [" sc1", " sc1"]
def finalize_ops(dt, tmp, pkd, pk, lds):
    ops = [f"v_accvgpr_read_b32 v{tmp+j}, a{AO+16*dt+j}" for j in range(16)]
    if pk: ops += [f"v_pk_mul_f32 v[{tmp+2*m}:{tmp+2*m+1}], v[{tmp+2*m}:{tmp+2*m+1}], v[{vR}:{vR+1}] op_sel_hi:[1,0]" for m in range(8)]
    else: ops += [f"v_mul_f32 v{tmp+j}, v{tmp+j}, v{vR}" for j in range(16)]
    ops += [f"v_cvt_pk_bf16_f32 v{pkd+8*dt+m}, v{tmp+2*m}, v{tmp+2*m+1}" for m in range(8)]
    ops.append(f"s_add_u32 s{sT0}, s{sOoff}, {dt*6144}")
    for u in range(2):
        ops.append(f"buffer_store_dwordx4 {R('v', pkd+8*dt+4*u, 4)}, v{vL16}, s[{sWS}:{sWS+3}], s{sT0} offen offset:{u*1024}{OPOL[0]}")
        if lds: ops.append(f"ds_write_b128 v{aB}, {R('v', pkd+8*dt+4*u, 4)} offset:{dt*6144+u*1024}")
    return ops

def flag_store(a, soff, val):
    a(f"v_mov_b32 v{vT}, {val}")
    a(f"v_mov_b32 v{vT+1}, 0")
    a("s_mov_b64 exec, 1")
    a(f"buffer_store_dword v{vT}, v{vT+1}, s[{sWS}:{sWS+3}], s{soff} offen{OPOL[0] if (soff == sF1 and val) else ' sc1'}")
    a("s_mov_b64 exec, -1")

def wave_poll(a, sline, val, tag, pol=" sc1"):
    a(f"s_and_b32 s{sT0}, s{sline}, 0xffffffcf")
    a(f"s_mov_b32 s{sT1}, 0")
    a("s_mov_b64 exec, 15")
    a.label(f"L_wp{tag}")
    a(f"buffer_load_dword v{vM0}, v{vL16}, s[{sWS}:{sWS+3}], s{sT0} offen{pol}")
    a(f"s_add_u32 s{sT1}, s{sT1}, 1")
    a(f"s_cmp_ge_u32 s{sT1}, {SPIN}")
    a(f"s_cbranch_scc1 L_wpd{tag}")
    a("s_waitcnt vmcnt(0)")
    a(f"v_cmp_gt_u32 vcc, {val}, v{vM0}")
    a(f"s_cbranch_vccnz L_wp{tag}")
    a.label(f"L_wpd{tag}")
    a("s_mov_b64 exec, -1")

def rare_check(a, nxt):
    a(f"v_cmp_lt_f32 vcc, s{sTH}, v{vM0}")
    lab = a.newlabel("L_norare")
    a(f"s_cbranch_vccz {lab}")
    a(f"s_call_b64 s[{sRET}:{sRET+1}], L_rare{nxt}")
    a.label(lab)

def rare(a, buf):
    S = vS[buf]
    a.label(f"L_rare{buf}")
    for t in crosshalf_ops(vM0, vT, "v_max_f32"): a(t)
    a(f"v_max_f32 v{vM0}, 0, v{vM0}")
    a(f"v_sub_f32 v{vM1}, 0, v{vM0}")
    a(f"v_exp_f32 v{vM1}, v{vM1}")
    a("s_nop 7")
    for j in range(32): a(f"v_sub_f32 v{S+j}, v{S+j}, v{vM0}")
    a("s_branch L_rescaleO")

def rescaleO(a):
    a.label("L_rescaleO")
    for j in range(16): a(f"v_sub_f32 v{vNEG+j}, v{vNEG+j}, v{vM0}")
    a(f"v_mul_f32 v{vL0}, v{vL0}, v{vM1}")
    a(f"v_mul_f32 v{vL1}, v{vL1}, v{vM1}")
    for j in range(0, 64, 2):
        for k in range(2): a(f"v_accvgpr_read_b32 v{vT+k}, a{AO+j+k}")
        for k in range(2): a(f"v_mul_f32 v{vT+k}, v{vT+k}, v{vM1}")
        for k in range(2): a(f"v_accvgpr_write_b32 a{AO+j+k}, v{vT+k}")
    a("s_nop 1")
    a(f"s_setpc_b64 s[{sRET}:{sRET+1}]")

class Plan:
    def __init__(self, o):
        self.o = o
        L = self.L = Layout(o)
        self.HT = 20
        M0 = self.M0 = self.HT
        qpat = o.get("qpat", [0, 1, 1, 2, 1, 2, 1, 2, 1, 2, 1, 2, 1, 2, 1])
        assert sum(qpat) == 20 and len(qpat) <= 15
        self.qch = {}; c = 20
        for n, k in enumerate(qpat):
            self.qch[n] = list(range(c, c + k)); c += k
        ol = o.get("olist", [20, 21, 22, 23, 25, 26, 27, 28, 29, 30, 31])
        self.och = {n: c for c, n in enumerate(ol)}
        self.NOM = len(ol)
        assert self.NOM <= 12
        self.nV15 = 32
        self.tV15 = M0 + 32
        self.Tc = self.tV15 + (20 - self.NOM) + 1
        self.NT = self.Tc + 1
        it = self.items = {}
        def add(key, need, last, lo, sz, nl): it[key] = dict(need=need, last=last, lo=lo, hi=lo + sz, nl=nl)
        wt = {c: c for c in range(20)}
        for n, cs in self.qch.items():
            for c in cs: wt[c] = M0 + n
        for c in range(40): add(("W", c), wt[c], wt[c], L.PB + (c % L.NW) * 8192, 8192, 8)
        for m in range(20): add(("X", m), wt[2*m], wt[2*m+1], L.XB + (m & 1) * 12288, 12288, 12)
        for i in range(16):
            t = M0 + max(0, 2 * i - 1); add(("K", i), t, t, L.KB + (i % L.NK) * 16384, 16384, 16)
            t = M0 + 2 * i + 2; add(("V", i), t, t, L.VB + (i % L.NV if i < 15 else L.v15) * 16384, 16384, 16)
        self.nfin = 18
        ot = {c: M0 + n for n, c in self.och.items()}
        for c in range(12):
            t = last = ot.get(c, self.tV15 + c - self.NOM)
            add(("B", c), t if c >= 4 else M0 + self.nfin, last, L.XB + (c & 3) * 6144, 6144, 6)
        self.oslot = {}
        for c in range(self.NOM):
            self.oslot[c] = c % L.NO
            add(("O", c), ot[c], ot[c], L.PB + self.oslot[c] * 10240, 10240, 10)
        nslots = (LDSSZ - 24576) // 10240
        def free_at(lo, hi):
            return max([v["last"] + 2 for v in it.values() if v["lo"] < hi and lo < v["hi"]] + [0])
        for c in range(self.NOM, 32):
            s = min(range(nslots), key=lambda s: (free_at(s * 10240, s * 10240 + 10240), s))
            f = free_at(s * 10240, s * 10240 + 10240)
            if c <= 20: need = last = self.tV15 + c - self.NOM
            else: need, last = self.Tc, 999
            assert f <= need, (c, f, need)
            self.oslot[c] = s
            add(("O", c), need, last, s * 10240, 10240, 10)
        for k, v in it.items():
            v["free"] = max([w["last"] + 2 for kk, w in it.items() if kk != k and w["lo"] < v["hi"] and v["lo"] < w["hi"] and w["last"] < v["need"]] + [0])
            for kk, w in it.items():
                if kk != k and w["lo"] < v["hi"] and v["lo"] < w["hi"]:
                    assert w["last"] < v["need"] or v["last"] < w["need"], (k, kk)
        assert it[("B", 0)]["free"] <= M0 + self.nfin + 1 and it[("B", 3)]["free"] <= M0 + self.nfin + 1

    def schedule(self, variant):
        o, it, M0 = self.o, self.items, self.M0
        pos = {}
        DW = o.get("DW", 5)
        for c in range(20): pos[("W", c)] = max(it[("W", c)]["free"], c - DW + 1, 0)
        for m in range(10): pos[("X", m)] = it[("X", m)]["free"]
        pre = o.get("pre" + variant, o.get("pre", {("K", 0): 17, ("K", 1): 17, ("V", 0): 19}))
        pos.update(pre)
        parK, parH = o.get("parK", 1), o.get("parH", o.get("parK", 1))
        quiet = set(M0 + q for q in o.get("quiet", []))
        DKV, DH = o.get("DKV", 3), o.get("DH", 2)
        def place(key, d, prev):
            v = it[key]
            par = parK if key[0] in "KV" else parH
            ok = lambda s: (s - M0 - par) % 2 == 0 and s not in quiet
            lo = max(v["free"], prev, M0 - 2)
            if o.get("clump", 1):
                cand = [s for s in range(lo, v["need"]) if ok(s)]
                good = [s for s in cand if s <= v["need"] - d + 1]
                s = good[-1] if good else (cand[0] if cand else lo)
            else:
                s = max(lo, v["need"] - d + 1)
            assert s <= v["need"], (key, s, v)
            pos[key] = s; return s
        for typ, rng, d in (("K", range(16), DKV), ("V", range(16), DKV), ("W", range(20, 40), DH), ("X", range(10, 20), DH),
                            ("B", range(4, 12), 2), ("O", range(self.NOM), DH)):
            prev = 0
            for i in rng:
                if (typ, i) in pos: prev = pos[(typ, i)]; continue
                if (typ, i) == ("B", 4) and not o.get("natf", 0):
                    prev = pos[(typ, i)] = it[(typ, i)]["need"] - 1; continue
                if typ == "X" and o.get("xcache", 1):
                    prev = pos[(typ, i)] = max(it[(typ, i)]["free"], prev); continue
                if typ in "KV" and i < o.get("asap", 0): d = 99
                elif typ in "KV": d = DKV
                prev = place((typ, i), d, prev)
        pos[("V", 15)] = max(it[("V", 15)]["free"], pos[("V", 14)], pos[("K", 15)] + o.get("v15gap", 1))
        prev = pos[("O", self.NOM - 1)]
        pace = o.get("opace", 3); s = max(prev, pos[("V", 15)] + o.get("olate", 0)); k = 0
        for c in range(self.NOM, 32):
            v = it[("O", c)]
            if k >= pace and s < v["need"] - 1: s += 1; k = 0
            if v["free"] > s: s = v["free"]; k = 0
            assert s <= v["need"], (c, s, v)
            pos[("O", c)] = s; k += 1
        sched = [[] for _ in range(self.NT + 1)]
        hitfirst = o.get("hitfirst", 1)
        def key(x):
            miss = x[0] in "KV"
            late = x[0] == "O" and x[1] >= self.NOM
            if pos[x] < M0 - 2: return (0 if (miss and x in pre and o.get("prefirst", 0)) else 1, it[x]["need"], x[0] != "X", x[1])
            return (2 if late else (int(miss) if hitfirst else int(not miss)), it[x]["need"], x[0] != "X", x[1])
        for x in sorted(pos, key=key): sched[pos[x]].append(x)
        need = {k: v["need"] for k, v in it.items()}
        if o.get("xcache", 1):
            for m in range(10): sched[it[("X", m)]["need"] + 1].append(("XR", m))
        g = M0 + 12
        sched[g].insert(0, ("G", 0)); need[("G", 0)] = g + 2
        sched[g + 3].insert(0, ("CG", 0))
        for p in range(3):
            s = pos[("B", 4 + 4 * p)] if p < 2 else M0 + 30
            fs = s - (1 if (p == 0 and not o.get("natf", 0)) else 2)
            if p == 2: fs = s - o.get("f2d", 2)
            sched[fs].insert(0, ("F", p)); need[("F", p)] = s - 1
            if p < 2:
                if p == 0 and not o.get("natf", 0):
                    bs = [x for x in sched[s] if x[0] == "B"]
                    sched[s] = [x for x in sched[s] if x[0] != "B"] + bs
                sched[s].insert(sched[s].index(("B", 4 + 4 * p)), ("CF", p))
            else:
                sched[s].append(("CF", p))
        for k, tt in enumerate(o.get("touch" + variant, o.get("touch", [M0 + 3, M0 + 5, M0 + 7, M0 + 9, M0 + 11]))):
            sched[tt].append(("T", k)); need[("T", k)] = 999
        for k, tt in enumerate(o.get("touchq" + variant, o.get("touchq", []))):
            sched[tt].append(("U", k)); need[("U", k)] = 999
        return sched, need

def xreg(m, p):
    r = 32 + m * 48 + p * 4
    return R('v', r, 4) if r < 256 else R('a', r - 256, 4)

def emit_loader_schedule(a, P, variant, st, o):
    sched, need = P.schedule(variant)
    it = P.items
    issued = []; total = 0
    vF, vG, vB = 24, 25, 22
    xc = o.get("xcache", 1)
    for t in range(P.NT):
        ldsop = False
        for x in sched[t]:
            ty, c = x
            if ty == "CG":
                lab = a.newlabel("L_cg")
                a(f"v_cmp_ne_u32 vcc, s{sCNT}, v{vG}")
                a("s_and_b32 vcc_lo, vcc_lo, 15")
                a(f"s_cbranch_scc0 {lab}")
                a(f"s_call_b64 s[{sRET}:{sRET+1}], L_spinG")
                a.label(lab); continue
            if ty == "CF":
                lab = a.newlabel("L_cf")
                a(f"s_add_u32 s{sT1}, s{sHH}, {c+1}")
                a(f"s_and_b32 s{sT1}, s{sT1}, 3")
                a(f"s_lshl_b32 s{sT1}, s{sT1}, 2")
                a(f"s_lshl_b32 s{sT1}, 7, s{sT1}")
                a(f"v_cmp_gt_u32 vcc, 1, v{vF}")
                a(f"s_and_b32 vcc_lo, vcc_lo, s{sT1}")
                a(f"s_cbranch_scc0 {lab}")
                a(f"s_call_b64 s[{sRET}:{sRET+1}], L_spinF")
                a.label(lab); continue
            if ty == "XR":
                for p in range(12): a(f"ds_read_b128 {xreg(c, p)}, v29 offset:{(c&1)*12288+p*1024}")
                ldsop = True; continue
            if ty == "X" and c >= 10 and xc:
                for p in range(12): a(f"ds_write_b128 v29, {xreg(c-10, p)} offset:{(c&1)*12288+p*1024}")
                ldsop = True; continue
            if ty == "G":
                a(f"buffer_load_dword v{vG}, v26, s[{sDBG}:{sDBG+3}], s{sCL} offen sc1"); n = 1
            elif ty == "F":
                a(f"buffer_load_dword v{vF}, v27, s[{sWS}:{sWS+3}], s{sF1} offen{o.get('ppol', OPOL[1])}"); n = 1
            elif ty == "T":
                a(f"buffer_load_dword v28, v23, s[{sWO}:{sWO+3}], s{sT3} offen{o.get('tpol','')}")
                a(f"s_add_u32 s{sT3}, s{sT3}, 8192"); n = 1
            elif ty == "U":
                if c == 2: a("s_mov_b32 exec_hi, 0")
                a(f"buffer_load_dword v28, v2, s[{sW}:{sW+3}], s{sT2} offen{o.get('upol','')}")
                if c == 2: a("s_mov_b32 exec_hi, -1")
                a(f"s_add_u32 s{sT2}, s{sT2}, {8*8192}"); n = 1
            else:
                if ty == "W" and c == 20:
                    a(f"s_add_u32 s{sWg}, s{sWg}, 256")
                    a(f"s_add_u32 s{sWend}, s{sWend}, 256")
                if ty == "O" and c == 16:
                    a(f"s_add_u32 s{sOg}, s{sOg}, {128*1280}")
                    a(f"s_add_u32 s{sOend}, s{sOend}, {128*1280}")
                a(f"s_mov_b32 m0, {it[x]['lo']}")
                a(f"s_call_b64 s[{sRET}:{sRET+1}], L_iss{ty}")
                if ty in "OB" and c % 4 == 3: a(f"s_call_b64 s[{sRET}:{sRET+1}], L_next{ty}")
                n = it[x]["nl"]
            total += n; issued.append((x, total))
        if t == 0: a(f"s_call_b64 s[{sRET}:{sRET+1}], L_late_setup")
        req = max(c for x, c in issued if need[x] <= t)
        if st.on and t > 0:
            a("s_waitcnt lgkmcnt(0)")
            a(f"v_writelane_b32 v30, s70, {min(63, t-1)}")
            if o.get("trace2"): a("s_memrealtime s[72:73]")
        a(f"s_waitcnt vmcnt({min(63, total - req)})" + (" lgkmcnt(0)" if ldsop else ""))
        if st.on and t > 0 and o.get("trace2"):
            a("s_memrealtime s[74:75]")
            a("s_waitcnt lgkmcnt(0)")
            a(f"v_writelane_b32 v31, s72, {min(63, t)}")
            a(f"v_writelane_b32 v3, s74, {min(63, t)}")
        a("s_barrier")
        if st.on: a("s_memrealtime s[70:71]")
    if st.on:
        a("s_waitcnt lgkmcnt(0)")
        a(f"v_writelane_b32 v30, s70, {min(63, P.NT-1)}")

def pad(a, o, point):
    p = o.get("pad")
    if not p or p[0] != point: return
    a("s_waitcnt lgkmcnt(0)")
    if len(p) > 2:
        a(f"s_and_b32 s86, s2, {p[3]}")
        a(f"s_cmp_lg_u32 s86, {p[2]}")
        a("s_cbranch_scc1 L_padx")
    a(f"s_add_u32 s86, s84, {p[1]}")
    a.label("L_pad")
    a("s_memrealtime s[82:83]")
    a("s_waitcnt lgkmcnt(0)")
    a("s_sub_u32 s87, s82, s86")
    a("s_cmp_lt_i32 s87, 0")
    a("s_cbranch_scc1 L_pad")
    a.label("L_padx")

def gen_middle(a, P, o, st):
    L = P.L
    NA = o.get("NA", 24)
    def projparts(n):
        rd, mf = [], []
        for k, c in enumerate(P.qch.get(n, [])):
            rd += q_reads(L, c, k); mf += q_mfmas(c, k)
        if n in P.och:
            c = P.och[n]; b = o_breads(c)
            rd += [b[0]] + o_wreads(P.oslot[c], 0, (0,)) + [b[1]] + o_wreads(P.oslot[c], 0, (1,))
            mf += o_mfmas(c)
        return rd, mf
    pr, pm = projparts(0)
    assert not pm
    a("s_barrier")
    emit_tick(a, q_mfmas(19, 1), spread(k_reads(0), 6))
    st.stamp(a, 1)
    pad(a, o, 1)
    a(f"s_cmp_lg_u32 s{sWAVE}, 0")
    a("s_cbranch_scc1 L_noann")
    a(f"s_lshl_b32 s{sT0}, s{sCL}, 4")
    a(f"s_lshl_b32 s{sT1}, s{sJ}, 2")
    a(f"s_add_u32 s{sT0}, s{sT0}, s{sT1}")
    a(f"s_add_u32 s{sT0}, s{sT0}, s{sHH}")
    a(f"v_mov_b32 v{vM0}, 1")
    a("s_mov_b64 exec, 1")
    a(f"buffer_store_byte v{vM0}, v{vL0}, s[{sDBG}:{sDBG+3}], s{sT0} offen sc1")
    a("s_mov_b64 exec, -1")
    a.label("L_noann")
    a("s_nop 7")
    cv = q_convert_ops(AQ[0], True)
    qk = qk_mfmas(0)
    a("s_waitcnt lgkmcnt(0)")
    for t in cv[:24]: a(t)
    for dt in range(4):
        ms = [qk[2*dt], qk[8+2*dt], qk[2*dt+1], qk[8+2*dt+1]]
        a("s_nop 1")
        emit_tick(a, ms, spread(cv[24*(dt+1):24*(dt+2)], 4) if dt < 3 else [])
    pr, pm = projparts(1)
    a("s_barrier")
    val = init_ops(vS[0])
    if pm: emit_tick(a, pm, spread(val[20:], len(pm)), pre=pr + k_reads(1 % L.NK) + val[:20])
    else: emit_tick(a, [], [], pre=k_reads(1 % L.NK) + val)
    a("s_waitcnt lgkmcnt(0)")
    for i in range(15):
        cur, nxt = i & 1, (i + 1) & 1
        n = 2 * i + 2
        pr, pm = projparts(n)
        a("s_barrier")
        if i == 8: st.stamp(a, 2)
        ng = 16 + len(pm)
        fs = [spread(pr + v_reads(i % L.NV), ng - 2)]
        sm = softmax_ops(vS[cur], 0, NA)
        if i == 8:
            assert not pm
            fin = sum((finalize_ops(dt, 240, 208, False, True) for dt in range(4)), [])
            fs.append(spread(fin, ng - 3, start=0)); fs.append(spread(sm, ng))
        else:
            fs.append(spread(sm, ng))
        emit_tick(a, qk_mfmas(i + 1) + pm, merge(*fs))
        if i == 8: a(f"s_add_u32 s{sOoff}, s{sOoff}, 24576")
        if n == o.get("nflag1", 19):
            a("s_waitcnt vmcnt(0)")
            flag_store(a, sF1, 1)
        a("s_waitcnt lgkmcnt(0)")
        n = 2 * i + 3
        pr, pm = projparts(n)
        a("s_barrier")
        if i == 14:
            a(f"s_add_u32 s{sT0}, s{sHH}, 3")
            a(f"s_and_b32 s{sT0}, s{sT0}, 3")
            a(f"s_sub_u32 s{sT0}, s{sT0}, s{sHH}")
            a(f"s_mul_i32 s{sT0}, s{sT0}, 49152")
            a(f"s_add_u32 s{sT0}, s{sT0}, s{sOoff}")
            a(f"s_sub_u32 s{sT0}, s{sT0}, 24576")
            for cc in range(4):
                for ks in range(2):
                    a(f"buffer_load_dwordx4 {R('a', aPB+(cc*2+ks)*4, 4)}, v{vL16}, s[{sWS}:{sWS+3}], s{sT0} offen offset:{ks*1024}{OPOL[1]}")
                if cc < 3: a(f"s_add_u32 s{sT0}, s{sT0}, 6144")
        ng = 16 + len(pm)
        kr = k_reads((i + 2) % L.NK) if i < 14 else []
        fs = [spread(pr + kr, ng - 2 if kr else 12)] if (pr or kr) else []
        fs.append(spread(softmax_ops(vS[cur], NA, 32), 10))
        if i == 6:
            assert not pm
            fs.append(spread(q_convert_ops(AQ[1], False), ng, start=1)); fs.append(spread(max_ops(vS[nxt]), ng, start=10))
        elif i == 7:
            io = init_ops(vS[nxt])
            fs.append(spread(io[:16], 10, start=3)); fs.append(spread(io[16:] + lfin_ops(), ng, start=10))
        elif i == 14:
            fs.append(spread(max_ops(vS[nxt]), 16, start=9))
        else:
            fs.append(spread(max_ops(vS[nxt]), ng, start=10))
        if i == 14:
            emit_tick(a, pv_mfmas(i), merge(*fs))
            rare_check(a, nxt)
            sm = softmax_ops(vS[nxt], 0, 32) + lfin_ops()[:-2]
            a("s_waitcnt lgkmcnt(0)")
            if pm: emit_tick(a, pm, spread(sm, len(pm)))
            else:
                for x in sm: a(x if isinstance(x, str) else x[0])
        else:
            emit_tick(a, pv_mfmas(i) + pm, merge(*fs))
            if i != 7: rare_check(a, nxt)
        if n == o.get("nflag1", 19):
            a("s_waitcnt vmcnt(0)")
            flag_store(a, sF1, 1)
        a("s_waitcnt lgkmcnt(0)")

def gen_tail(a, P, o, st):
    L = P.L
    c0 = P.NOM
    vPK = 96
    BF = (vBF, 32)
    a(f"v_add_u32 v{aK}, 61440, v{aO}")
    a(f"v_add_u32 v{aK+1}, 122880, v{aO}")
    a("s_barrier")
    st.stamp(a, 3)
    pad(a, o, 3)
    vr_ = v_reads(L.v15, True)
    def creads(c):
        buf = (c - c0) & 1
        r = o_wreads(P.oslot[c], buf)
        if c < 12: r = o_breads(c, BF[buf]) + r
        return r
    fin = [finalize_ops(dt, 64 + 16 * (dt & 1), vPK, True, False) for dt in range(4)]
    fl = spread(vr_[10:] + creads(c0), 12)
    fl = merge(fl, spread(fin[0], 12, start=8), spread(fin[1], 16, start=12))
    emit_tick(a, pv_mfmas(15, True), fl, pre=vr_[:10])
    for t in fin[2]: a(t)
    for t in fin[3]: a(t)
    st.stamp(a, 4)
    a("s_waitcnt lgkmcnt(0)")
    def chunk(c, nextreads, extra=()):
        buf = (c - c0) & 1
        if c < 12: m = o_mfmas(c, buf, 'v', BF[buf])
        elif c < 16: m = o_mfmas(c, buf, 'a', aPB + 8 * (c - 12))
        elif c < 20: m = o_mfmas(c, buf, 'v', vPK + 8 * (c - 16))
        else: m = o_mfmas(c, buf, 'a', aPB + 8 * (c - 20))
        fl = spread(nextreads, 9) if nextreads else [[]]
        if extra: fl = merge(fl, spread(list(extra), 10))
        emit_tick(a, m, fl)
        a("s_waitcnt lgkmcnt(0)")
    vPA, vOUT = 3, 6
    ex = []
    for i in range(3):
        ex += [f"v_add_u32 v{vM0}, {64*i}, v0",
               f"v_lshrrev_b32 v{vM1}, 3, v{vM0}",
               f"v_and_b32 v{vM0}, 7, v{vM0}",
               f"v_lshlrev_b32 v{vPA+i}, 9, v{vM1}",
               f"v_lshl_add_u32 v{vPA+i}, v{vM0}, 4, v{vPA+i}",
               f"v_mul_u32_u24 v{vOUT+i}, 2560, v{vM0}",
               f"v_lshl_add_u32 v{vOUT+i}, v{vM1}, 4, v{vOUT+i}"]
    fat = min(19, c0 + o.get("flagafter", 3) - 1)
    for c in range(c0, 20):
        k = c - c0
        a("s_barrier")
        if c == 12 and c <= fat: a("s_waitcnt vmcnt(8)")
        chunk(c, creads(c + 1), ex[7 * k:7 * k + 7] if k < 3 else ())
        if c == fat:
            a("s_waitcnt vmcnt(0)")
            flag_store(a, sF1, 2)
            st.stamp(a, 5)
    a(f"s_lshl_b32 s{sT2}, s{sHH}, 1")
    a(f"s_mul_i32 s{sT2}, s{sT2}, 24576")
    a(f"s_sub_u32 s{sT2}, s{sOoff}, s{sT2}")
    wave_poll(a, sF1, 2, "1", o.get('ppol', OPOL[1]))
    st.stamp(a, 6)
    for p in range(3):
        a(f"s_add_u32 s{sT0}, s{sHH}, {p+1}")
        a(f"s_and_b32 s{sT0}, s{sT0}, 3")
        a(f"s_mul_i32 s{sT0}, s{sT0}, 49152")
        a(f"s_add_u32 s{sT0}, s{sT0}, s{sT2}")
        for cc in range(4):
            for ks in range(2):
                a(f"buffer_load_dwordx4 {R('a', aPB+(p*8+cc*2+ks)*4, 4)}, v{vL16}, s[{sWS}:{sWS+3}], s{sT0} offen offset:{ks*1024}{OPOL[1]}")
            if cc < 3: a(f"s_add_u32 s{sT0}, s{sT0}, 6144")
    a("s_barrier")
    for c in range(20, 32):
        a(f"s_waitcnt vmcnt({22 - 2 * (c - 20)})")
        chunk(c, creads(c + 1) if c < 31 else [])
    st.stamp(a, 7)
    a("s_nop 4")
    a(f"s_add_u32 s{sT0}, s{sPoff}, 4096")
    a(f"s_add_u32 s{sT1}, s{sPoff}, 8192")
    for ct in range(5):
        b = vOA + 16 * ct
        for m in range(8): a(f"v_cvt_pk_bf16_f32 v{64+8*ct+m}, v{b+2*m}, v{b+2*m+1}")
        for u in range(2):
            f = 2 * ct + u
            a(f"buffer_store_dwordx4 {R('v', 64+4*f, 4)}, v{vL16}, s[{sWS}:{sWS+3}], s{(sPoff, sT0, sT1)[f>>2]} offen offset:{(f&3)*1024} sc1")
    a(f"s_mul_i32 s{sT2}, s{sJ}, {30720-128}")
    a(f"s_sub_u32 s{sT2}, s{sPoff}, s{sT2}")
    a(f"s_mul_i32 s{sT3}, s{sB}, 96")
    a(f"s_lshl_b32 s{sT0}, s{sWAVE}, 5")
    a(f"s_add_u32 s{sT3}, s{sT3}, s{sT0}")
    a(f"s_lshl_b32 s{sT0}, s{sJ}, 3")
    a(f"s_add_u32 s{sT3}, s{sT3}, s{sT0}")
    a(f"s_mul_i32 s{sT3}, s{sT3}, 2560")
    a(f"s_mul_i32 s{sT0}, s{sBLK}, 1280")
    a(f"s_add_u32 s{sT3}, s{sT3}, s{sT0}")
    a(f"s_mul_i32 s{sT0}, s{sHH}, 320")
    a(f"s_add_u32 s{sT3}, s{sT3}, s{sT0}")
    a("s_waitcnt vmcnt(0)")
    flag_store(a, sF2, 1)
    st.stamp(a, 8)
    wave_poll(a, sF2, 1, "2")
    st.stamp(a, 9)
    for i in range(3):
        if i == 2: a("s_mov_b32 exec_hi, 0")
        for j in range(4):
            a(f"s_add_u32 s{sT0}, s{sT2}, {j*30720}")
            a(f"buffer_load_dwordx4 {R('v', 128+16*i+4*j, 4)}, v{vPA+i}, s[{sWS}:{sWS+3}], s{sT0} offen sc1")
    a("s_mov_b64 exec, -1")
    a(f"s_mov_b32 s{sT1}, 0xffff0000")
    for i in range(3):
        a(f"s_waitcnt vmcnt({8 - 3 * i})")
        if i == 2: a("s_mov_b32 exec_hi, 0")
        for d in range(4):
            for j in range(4):
                a(f"v_lshlrev_b32 v{64+j}, 16, v{128+16*i+4*j+d}")
                a(f"v_and_b32 v{68+j}, s{sT1}, v{128+16*i+4*j+d}")
            a("v_add_f32 v64, v64, v65"); a("v_add_f32 v66, v66, v67"); a("v_add_f32 v68, v68, v69"); a("v_add_f32 v70, v70, v71")
            a("v_add_f32 v64, v64, v66"); a("v_add_f32 v68, v68, v70")
            a(f"v_cvt_pk_bf16_f32 v{72+4*i+d}, v64, v68")
        a(f"buffer_store_dwordx4 {R('v', 72+4*i, 4)}, v{vOUT+i}, s[{sOUT}:{sOUT+3}], s{sT3} offen{o.get('outpol','')}")
    a("s_mov_b64 exec, -1")

def gen_kernel(a, o):
    st = Stamps(o.get("stamps", 0))
    OPOL[0] = o.get("opol", " sc1"); OPOL[1] = o.get("lpol", " sc1")
    P = Plan(o); L = P.L
    k = NAME + "_kernel"
    kernel_begin(a, k)
    a("s_cmp_ge_u32 s2, 256")
    a("s_cbranch_scc1 L_exit")
    st.stamp(a, 0)
    if o.get("pad"): a("s_memrealtime s[84:85]")
    a(f"s_and_b32 s{sT0}, s2, 7")
    a(f"s_lshr_b32 s{sBLK}, s{sT0}, 2")
    a(f"s_mul_i32 s{sT1}, s{sBLK}, 40")
    a(f"s_add_u32 s{sEX}, s0, s{sT1}")
    a(f"s_addc_u32 s{sEX+1}, s1, 0")
    a(f"s_load_dwordx8 s[{sLD}:{sLD+7}], s[{sEX}:{sEX+1}], 0")
    a(f"s_load_dwordx2 s[{sWO}:{sWO+1}], s[{sEX}:{sEX+1}], 32")
    a(f"s_load_dwordx2 s[{sOUT}:{sOUT+1}], s[0:1], 80")
    a(f"s_load_dwordx2 s[{sDBG}:{sDBG+1}], s[0:1], 88")
    a(f"s_load_dwordx2 s[{sWS}:{sWS+1}], s[0:1], 96")
    a(f"s_getpc_b64 s[{sPC}:{sPC+1}]")
    a("L_pc:")
    a(f"s_and_b32 s{sJ}, s{sT0}, 3")
    a(f"s_lshr_b32 s{sT0}, s2, 3")
    a(f"s_and_b32 s{sB}, s{sT0}, 7")
    a(f"s_lshr_b32 s{sHH}, s{sT0}, 3")
    a(f"s_mov_b32 s{sT0}, L_exit-L_pc")
    a("v_lshrrev_b32 v1, 6, v0")
    a("v_lshlrev_b32 v2, 7, v0")
    a(f"v_readfirstlane_b32 s{sWAVE}, v1")
    a("v_and_b32 v0, 63, v0")
    a(f"s_cmp_eq_u32 s{sWAVE}, 3")
    a("s_cbranch_scc1 L_nopf3")
    for rep in range(3):
        if rep: a("v_add_u32 v2, 24576, v2")
        a(f"v_cmp_gt_u32 vcc, s{sT0}, v2")
        a(f"s_and_saveexec_b64 s[{sRET}:{sRET+1}], vcc")
        a(f"s_cbranch_execz L_nopf{rep}")
        a(f"global_load_dword v47, v2, s[{sPC}:{sPC+1}]")
        a(f"L_nopf{rep}:")
        a(f"s_mov_b64 exec, s[{sRET}:{sRET+1}]")
    a("L_nopf3:")
    a(f"s_lshl_b32 s{sCL}, s{sBLK}, 3")
    a(f"s_add_u32 s{sCL}, s{sCL}, s{sB}")
    a(f"s_lshl_b32 s{sT1}, s{sJ}, 3")
    a(f"s_lshl_b32 s{sT0}, s{sHH}, 1")
    a(f"s_add_u32 s{sT1}, s{sT1}, s{sT0}")
    a(f"s_lshl_b32 s{sT2}, s{sB}, 5")
    a(f"s_add_u32 s{sT2}, s{sT2}, s{sT1}")
    a(f"s_lshl_b32 s{sT0}, s{sCL}, 2")
    a(f"s_add_u32 s{sF1}, s{sT0}, s{sJ}")
    a(f"s_lshl_b32 s{sF1}, s{sF1}, 7")
    a(f"s_add_u32 s{sF1}, s{sF1}, {WS_F1}")
    a(f"s_add_u32 s{sF2}, s{sT0}, s{sHH}")
    a(f"s_lshl_b32 s{sF2}, s{sF2}, 7")
    a(f"s_add_u32 s{sF2}, s{sF2}, {WS_F2}")
    a(f"s_cmp_lg_u32 s{sWAVE}, 3")
    a("s_cbranch_scc1 L_awave")
    vK, vV, vW, vX, vO, vB = 4, 8, 9, 13, 17, 22
    a("v_lshrrev_b32 v1, 3, v0")
    a("v_and_b32 v2, 7, v0")
    for p in range(2):
        a(f"v_add_u32 v3, {8*p}, v1")
        a("v_bfe_u32 v23, v3, 1, 3")
        a("v_xor_b32 v23, v23, v2")
        a("v_lshlrev_b32 v23, 4, v23")
        a("v_mul_u32_u24 v3, 1280, v3")
        a("v_add_u32 v23, v23, v3")
        a(f"v_subrev_u32 v{vX+p}, {p*1024}, v23")
        a(f"v_add_u32 v{vX+p+2}, {16*1280-2048}, v{vX+p}")
    a("v_lshrrev_b32 v1, 4, v0")
    a("v_and_b32 v2, 15, v0")
    a("v_lshlrev_b32 v3, 2, v1")
    a("v_xor_b32 v3, v3, v2")
    a("v_lshlrev_b32 v3, 4, v3")
    a(f"v_lshl_add_u32 v{vV}, v1, 8, v3")
    a(f"v_lshl_add_u32 v{vW}, v1, 13, v3")
    for p in range(1, 4): a(f"v_add_u32 v{vW+p}, {p*(4*8192-1024)}, v{vW}")
    a("v_xor_b32 v3, v1, v2")
    a("v_lshlrev_b32 v3, 4, v3")
    a(f"v_lshl_add_u32 v{vK}, v1, 8, v3")
    for p in range(1, 4): a(f"v_xor_b32 v{vK+p}, {p*64}, v{vK}")
    if o.get("rot", 1):
        a(f"s_mul_i32 s{sT0}, s{sB}, 5")
        a(f"s_lshr_b32 s{sT0}, s{sT0}, 2")
        a(f"s_mul_i32 s{sT3}, s{sHH}, 5")
        a(f"s_lshr_b32 s{sT3}, s{sT3}, 1")
        a(f"s_add_u32 s{sT0}, s{sT0}, s{sT3}")
        a(f"s_cmp_ge_u32 s{sT0}, 10")
        a(f"s_cselect_b32 s{sT3}, 10, 0")
        a(f"s_sub_u32 s{sT0}, s{sT0}, s{sT3}")
    else:
        a(f"s_mov_b32 s{sT0}, 0")
    a(f"s_lshl_b32 s{sWg}, s{sT1}, 8")
    a(f"s_add_u32 s{sWend}, s{sWg}, {640*8192}")
    a(f"s_lshl_b32 s{sT3}, s{sT0}, 19")
    a(f"s_add_u32 s{sWg}, s{sWg}, s{sT3}")
    a(f"s_mul_i32 s{sXg}, s{sB}, 122880")
    a(f"s_add_u32 s{sXend}, s{sXg}, 1280")
    a(f"s_lshl_b32 s{sT3}, s{sT0}, 7")
    a(f"s_add_u32 s{sXg}, s{sXg}, s{sT3}")
    a(f"s_lshl_b32 s{sKg}, s{sT2}, 17")
    a(f"s_mov_b32 s{sVg}, s{sKg}")
    a("s_waitcnt lgkmcnt(0)")
    srd(a, sX, sLD, sLD + 1, 983040)
    srd(a, sW, sLD + 6, sLD + 7, 5242880)
    srd(a, sK, sLD + 2, sLD + 3, 0x2000000)
    srd(a, sV, sLD + 4, sLD + 5, 0x2000000)
    ed = o.get("ed", "E")
    if ed == "ED":
        a(f"s_bitcmp1_b32 s{sB}, 0")
        a("s_cbranch_scc1 L_schedD")
    a("s_branch L_schedE")
    nod = o.get("nodma", "")
    def routine(name, srdn, vbase, nv, counts, sg, gstep, pol, tail):
        a.label(f"L_iss{name}")
        for g, n in enumerate(counts):
            so = sg
            if g > 0:
                a(f"s_add_u32 m0, m0, 4096")
                a(f"s_add_u32 s{sT0}, s{sg}, {gstep*g}")
                so = sT0
            for p in range(n):
                if name not in nod:
                    a(f"buffer_load_dwordx4 v{vbase + (p if nv == 4 else 0)}, s[{srdn}:{srdn+3}], s{so} offen offset:{p*1024}{pol} lds")
        tail()
        a(f"s_setpc_b64 s[{sRET}:{sRET+1}]")
    def wrap(sg, send, span):
        a(f"s_cmp_ge_u32 s{sg}, s{send}")
        a(f"s_cselect_b32 s{sT0}, {span}, 0")
        a(f"s_sub_u32 s{sg}, s{sg}, s{sT0}")
    def tailW():
        a(f"s_add_u32 s{sWg}, s{sWg}, {32*8192}"); wrap(sWg, sWend, 640 * 8192)
    def tailX():
        a(f"s_add_u32 s{sXg}, s{sXg}, 128"); wrap(sXg, sXend, 1280)
    routine("X", sX, vX, 4, (4, 4, 4), sXg, 32 * 1280, o.get("xpol", ""), tailX)
    routine("W", sW, vW, 4, (4, 4), sWg, 16 * 8192, o.get("wpol", ""), tailW)
    routine("K", sK, vK, 4, (4, 4, 4, 4), sKg, 4096, o.get("kvpol", " nt"), lambda: a(f"s_add_u32 s{sKg}, s{sKg}, 16384"))
    routine("V", sV, vV, 1, (4, 4, 4, 4), sVg, 4096, o.get("kvpol", " nt"), lambda: a(f"s_add_u32 s{sVg}, s{sVg}, 16384"))
    a.label("L_late_setup")
    srd(a, sWS, sWS, sWS + 1, 0x10000000)
    srd(a, sWO, sWO, sWO + 1, 5242880)
    srd(a, sDBG, sDBG, sDBG + 1, 256)
    for p in range(5):
        a(f"v_add_u32 v1, {64*p}, v0")
        a("v_mul_u32_u24 v2, 3277, v1")
        a("v_lshrrev_b32 v2, 16, v2")
        a("v_mul_u32_u24 v3, 20, v2")
        a("v_sub_u32 v3, v1, v3")
        a("v_mul_u32_u24 v2, 1280, v2")
        a("v_lshl_add_u32 v2, v3, 4, v2")
        a(f"v_subrev_u32 v{vO+p}, {(p*1024) if p < 4 else 0}, v2")
    a(f"v_lshlrev_b32 v{vB}, 4, v0")
    a(f"v_add_u32 v29, {L.XB}, v{vB}")
    a("v_and_b32 v26, 3, v0")
    a("v_lshlrev_b32 v26, 2, v26")
    a("v_and_b32 v27, 15, v0")
    a("v_lshlrev_b32 v27, 2, v27")
    a("v_lshlrev_b32 v23, 7, v0")
    a(f"s_mov_b32 s{sCNT}, 0x01010101")
    a(f"s_mul_i32 s{sOg}, s{sJ}, {1024*1280}")
    a(f"s_lshr_b32 s{sT3}, s2, 3")
    a(f"s_mul_i32 s{sT3}, s{sT3}, 40960")
    a(f"s_add_u32 s{sT3}, s{sT3}, s{sOg}")
    a(f"s_mul_i32 s{sT0}, s{sHH}, 320")
    a(f"s_add_u32 s{sOg}, s{sOg}, s{sT0}")
    a(f"s_add_u32 s{sOend}, s{sOg}, {1024*1280}")
    a(f"s_mul_i32 s{sT0}, s{sHH}, {256*1280}")
    a(f"s_add_u32 s{sOg}, s{sOg}, s{sT0}")
    a(f"s_lshl_b32 s{sT0}, s{sCL}, 5")
    a(f"s_lshl_b32 s{sT1}, s{sJ}, 3")
    a(f"s_add_u32 s{sT0}, s{sT0}, s{sT1}")
    a(f"s_mul_i32 s{sBg}, s{sT0}, 24576")
    a(f"s_add_u32 s{sBend}, s{sBg}, {8*24576}")
    a(f"s_add_u32 s{sT0}, s{sHH}, 1")
    a(f"s_and_b32 s{sT0}, s{sT0}, 3")
    a(f"s_mul_i32 s{sT0}, s{sT0}, 49152")
    a(f"s_add_u32 s{sBg}, s{sBg}, s{sT0}")
    a(f"s_lshl_b32 s{sCL}, s{sCL}, 4")
    a("v_lshrrev_b32 v2, 3, v0")
    a("v_lshlrev_b32 v2, 13, v2")
    a("v_bfe_u32 v1, v0, 1, 2")
    a("v_lshl_add_u32 v2, v1, 9, v2")
    a("v_and_b32 v1, 1, v0")
    a("v_lshl_add_u32 v2, v1, 7, v2")
    a(f"s_lshr_b32 s{sT2}, s2, 3")
    a(f"s_mul_i32 s{sT2}, s{sT2}, {20*8192}")
    a(f"s_lshl_b32 s{sT0}, s{sJ}, 11")
    a(f"s_add_u32 s{sT2}, s{sT2}, s{sT0}")
    a(f"s_add_u32 s{sT2}, s{sT2}, 256")
    if st.on:
        a("v_mov_b32 v30, 0"); a("v_mov_b32 v31, 0"); a("v_mov_b32 v3, 0")
    a(f"s_setpc_b64 s[{sRET}:{sRET+1}]")
    a.label("L_schedE")
    emit_loader_schedule(a, P, "E", st, o)
    if ed == "ED":
        a("s_branch L_loader_end")
        a.label("L_schedD")
        emit_loader_schedule(a, P, "D", st, o)
        a.label("L_loader_end")
    if st.on:
        a(f"s_lshl_b32 s{sT0}, s2, 10")
        a(f"s_add_u32 s{sT0}, s{sT0}, {STAMP + 0x100000}")
        a("v_lshlrev_b32 v29, 2, v0")
        for i, r in enumerate((30, 31, 3)):
            a(f"buffer_store_dword v{r}, v29, s[{sWS}:{sWS+3}], s{sT0} offen offset:{256*i}")
    a("s_endpgm")
    routine("B", sWS, vB, 1, (4, 2), sBg, 4096, OPOL[1], lambda: a(f"s_add_u32 s{sBg}, s{sBg}, 6144"))
    a.label("L_issO")
    pol = o.get("wopol", "")
    for ks in range(2):
        so = sOg
        if ks:
            a("s_add_u32 m0, m0, 1024")
            a(f"s_add_u32 s{sT0}, s{sOg}, {16*1280}"); so = sT0
        for p in range(4):
            if "O" not in nod: a(f"buffer_load_dwordx4 v{vO+p}, s[{sWO}:{sWO+3}], s{so} offen offset:{p*1024}{pol} lds")
        a("s_add_u32 m0, m0, 4096")
        a("s_nop 0")
        if "O" not in nod: a(f"buffer_load_dwordx4 v{vO+4}, s[{sWO}:{sWO+3}], s{so} offen{pol} lds")
    a(f"s_add_u32 s{sOg}, s{sOg}, {32*1280}")
    a(f"s_setpc_b64 s[{sRET}:{sRET+1}]")
    a.label("L_nextO")
    a(f"s_add_u32 s{sOg}, s{sOg}, {128*1280}")
    wrap(sOg, sOend, 1024 * 1280)
    a(f"s_setpc_b64 s[{sRET}:{sRET+1}]")
    a.label("L_nextB")
    a(f"s_add_u32 s{sBg}, s{sBg}, 24576")
    wrap(sBg, sBend, 8 * 24576)
    a(f"s_setpc_b64 s[{sRET}:{sRET+1}]")
    for nm, ld, cmp_, msk in (("G", f"buffer_load_dword v25, v26, s[{sDBG}:{sDBG+3}], s{sCL} offen sc1", f"v_cmp_ne_u32 vcc, s{sCNT}, v25", "15"),
                              ("F", f"buffer_load_dword v24, v27, s[{sWS}:{sWS+3}], s{sF1} offen{o.get('ppol', OPOL[1])}", "v_cmp_gt_u32 vcc, 1, v24", f"s{sT1}")):
        a.label(f"L_spin{nm}")
        a(f"s_mov_b32 s{sT0}, 0")
        a.label(f"L_spinl{nm}")
        a(ld)
        a(f"s_add_u32 s{sT0}, s{sT0}, 1")
        a(f"s_cmp_ge_u32 s{sT0}, {SPIN}")
        a(f"s_cbranch_scc1 L_spind{nm}")
        a("s_waitcnt vmcnt(0)")
        a(cmp_)
        a(f"s_and_b32 vcc_lo, vcc_lo, {msk}")
        a(f"s_cbranch_scc1 L_spinl{nm}")
        a.label(f"L_spind{nm}")
        a("s_waitcnt vmcnt(0)")
        a(f"s_setpc_b64 s[{sRET}:{sRET+1}]")
    a.label("L_awave")
    a(f"s_lshl_b32 s{sT0}, s{sWAVE}, 2")
    a(f"s_lshl_b32 s{sT3}, s{sHH}, 4")
    a(f"s_add_u32 s{sF1}, s{sF1}, s{sT3}")
    a(f"s_add_u32 s{sF1}, s{sF1}, s{sT0}")
    a(f"s_lshl_b32 s{sT3}, s{sJ}, 4")
    a(f"s_add_u32 s{sF2}, s{sF2}, s{sT3}")
    a(f"s_add_u32 s{sF2}, s{sF2}, s{sT0}")
    a("s_waitcnt lgkmcnt(0)")
    srd(a, sWS, sWS, sWS + 1, 0x10000000)
    srd(a, sOUT, sOUT, sOUT + 1, 8 * 96 * 1280 * 2)
    srd(a, sDBG, sDBG, sDBG + 1, 256)
    flag_store(a, sF1, 0)
    flag_store(a, sF2, 0)
    a(f"s_lshl_b32 s{sT0}, s{sBLK}, 8")
    a(f"s_add_u32 s{sT0}, s{sT0}, s{sT2}")
    a(f"s_mul_i32 s{sOoff}, s{sT0}, 24576")
    a(f"s_lshl_b32 s{sT0}, s{sWAVE}, 11")
    a(f"s_add_u32 s{sOoff}, s{sOoff}, s{sT0}")
    a(f"s_lshl_b32 s{sT0}, s{sCL}, 2")
    a(f"s_add_u32 s{sT0}, s{sT0}, s{sHH}")
    a(f"s_lshl_b32 s{sT0}, s{sT0}, 2")
    a(f"s_add_u32 s{sT0}, s{sT0}, s{sJ}")
    a(f"s_mul_i32 s{sPoff}, s{sT0}, 30720")
    a(f"s_mul_i32 s{sT0}, s{sWAVE}, 10240")
    a(f"s_add_u32 s{sPoff}, s{sPoff}, s{sT0}")
    a(f"s_add_u32 s{sPoff}, s{sPoff}, {WS_P}")
    a(f"s_mov_b32 s{sTH}, {THRESH}")
    a(f"s_mov_b32 s{sQS}, {QSCALE}")
    a(f"s_mov_b32 s{sQS+1}, {QSCALE}")
    a(f"v_mov_b32 v{vL0}, 0")
    a(f"v_mov_b32 v{vL1}, 0")
    a(f"v_lshlrev_b32 v{vL16}, 4, v0")
    a("v_and_b32 v64, 31, v0")
    a("v_lshrrev_b32 v65, 5, v0")
    a("v_and_b32 v66, 15, v64")
    a("v_xor_b32 v66, v66, v65")
    a("v_lshlrev_b32 v66, 4, v66")
    a("v_lshl_add_u32 v66, v64, 8, v66")
    a(f"v_add_u32 v66, {L.KB}, v66")
    for ks in range(8): a(f"v_xor_b32 v{aK+ks}, {ks*32}, v66")
    a("v_bfe_u32 v66, v64, 1, 3")
    a("v_xor_b32 v66, v66, v65")
    a("v_lshlrev_b32 v66, 4, v66")
    a("v_lshl_add_u32 v66, v64, 7, v66")
    a(f"s_lshl_b32 s{sT0}, s{sWAVE}, 12")
    a(f"s_add_u32 s{sT0}, s{sT0}, {L.XB}")
    a(f"v_add_u32 v66, s{sT0}, v66")
    for ks in range(4): a(f"v_xor_b32 v{aX+ks}, {ks*32}, v66")
    a("v_bfe_u32 v67, v0, 2, 2")
    a("v_and_b32 v68, 1, v0")
    a("v_lshlrev_b32 v68, 4, v68")
    a("v_bfe_u32 v69, v0, 1, 1")
    a("v_lshl_add_u32 v68, v69, 3, v68")
    a("v_bfe_u32 v69, v0, 4, 1")
    a("v_lshl_add_u32 v68, v69, 5, v68")
    a("v_lshl_add_u32 v69, v65, 2, v67")
    a("v_lshl_add_u32 v69, v69, 8, v68")
    a("v_lshl_add_u32 v69, v67, 6, v69")
    a(f"v_add_u32 v69, {L.VB}, v69")
    for dt in range(4): a(f"v_xor_b32 v{aV+dt}, {dt*64}, v69")
    a("v_lshl_add_u32 v70, v65, 3, v67")
    a("v_lshl_add_u32 v69, v70, 8, v68")
    a("v_lshl_add_u32 v69, v67, 6, v69")
    for dt in range(4): a(f"v_xor_b32 v{aW+dt}, {dt*64}, v69")
    a("v_mul_u32_u24 v70, 320, v70")
    a(f"v_add_u32 v{aO}, v70, v68")
    a(f"s_lshl_b32 s{sT0}, s{sWAVE}, 11")
    a(f"s_add_u32 s{sT0}, s{sT0}, {L.XB}")
    a(f"v_add_u32 v{aB}, s{sT0}, v{vL16}")
    a("s_waitcnt vmcnt(0)")
    for c in range(20):
        a("s_barrier")
        if c == 0: pad(a, o, 0)
        if c == 0:
            for r in q_reads(L, 0, 0): a(r)
        else:
            emit_tick(a, q_mfmas(c - 1, (c - 1) & 1), spread(q_reads(L, c, c & 1), 6))
        a("s_waitcnt lgkmcnt(0)")
    gen_middle(a, P, o, st)
    gen_tail(a, P, o, st)
    pad(a, o, 10)
    if st.on:
        a("s_waitcnt vmcnt(0)")
        st.stamp(a, 10)
        a(f"s_cmp_lg_u32 s{sWAVE}, 0")
        a("s_cbranch_scc1 L_exit")
        st.flush(a, range(11))
    a("s_endpgm")
    rare(a, 0)
    rare(a, 1)
    rescaleO(a)
    a.label("L_exit")
    a("s_endpgm")
    return P

def generate(fname, **o):
    a = Asm()
    a(HEADER_COMMENT.rstrip("\n"))
    a(f"; @launch grid=(256,1,1) block=(256,1,1) lds={LDSSZ}")
    a('.amdgcn_target "amdgcn-amd-amdhsa--gfx950"')
    P = gen_kernel(a, o)
    kernel_desc(a, NAME + "_kernel", 512, 102, 256)
    t = a.text()
    n = hazard.check(t)
    assert n == 0, f"{n} hazards"
    i0, i1 = t.index("L_schedE:"), t.index("L_awave:")
    nb_l = t[i0:i1].count("s_barrier"); nb_a = t[i1:].count("s_barrier")
    assert nb_a == P.NT and nb_l == P.NT * (2 if o.get("ed", "E") == "ED" else 1), (nb_a, nb_l, P.NT)
    open(fname, "w").write(t)
    return P

if __name__ == "__main__":
    P = generate("v3.s")
    generate("v3_st.s", stamps=1, trace2=1)
    s, n = P.schedule("E")
    for t, x in enumerate(s): print(t, x)
    print(P.oslot, P.NT, P.L.__dict__)
```

```python
import sys, struct, math
from asmlib import *
import hazard
from gen2 import (MF, WS_O, WS_P, WS_F1, WS_F2, STAMP, QSCALE, THRESH, SPIN, srd, spread, merge, emit_tick, R,
                  sX, sK, sV, sW, sWS, sWO, sOUT, sDBG, sWAVE, sB, sHH, sJ, sBLK, sT0, sT1, sT2, sT3, sCL, sRET, sCNT, sF1, sF2,
                  sST, sLD, sPC, sEX, Stamps)
from gen3 import (softmax_ops, max_ops, crosshalf_ops, init_ops, lfin_ops, k_reads, v_reads, qk_mfmas, pv_mfmas, q_convert_ops,
                  rare_check, rare, rescaleO, pad,
                  aK, aV, aW, aX, aO, vL16, vL0, vL1, vM0, vM1, vT, vR, vP, vNEG, vS, vQA, WF, XF, vOA, AO, AQ, AKF, AVF,
                  sOoff, sTH, sQS, sPoff)

LDSSZ = 163840
WB, XB, VB, KB = 0, 40960, 81920, 114688
NW, NX, NV, NK = 5, 3, 2, 3
V15SLOT = 3
NONCE_LDS = 77824
vTG, vH = 17, 16
sWg, sWend, sXg, sXend, sKg, sVg, sOg, sObase = 50, 51, 52, 53, 54, 55, 56, 57
sO0, sPr, sOutB, sM16, sLEAD = 55, 56, 57, 58, 59
vZ, vPO = 22, 15
aO2, aO3 = 13, 14
OFL = ([('v', 208 + 4 * i) for i in range(10)], [('a', 96 + 4 * i) for i in range(8)] + [('v', 248), ('v', 252)])
AO1 = 64
vPK = 96
PB1 = [('a', 128 + 4 * i) for i in range(16)] + [('a', 64 + 4 * i) for i in range(8)]
PB2 = [('a', 4 * i) for i in range(16)] + [('a', 224 + 4 * i) for i in range(8)]
sKo, sVo, sStr = 58, 59, 60

def q_reads(c, buf):
    wk, wb = WF[buf]; xb = XF[buf]
    ws = c % NW; xs = (c >> 1) % NX
    xr = [f"ds_read_b128 {R('v', xb+4*ks, 4)}, v{aX+2*(c&1)+ks} offset:{xs*12288}" for ks in range(2)]
    def wr(ks): return [f"ds_read_b64_tr_b16 {R(wk, wb+(ks*4+dt)*4+2*t, 2)}, v{aW+dt} offset:{ws*8192+ks*4096+t*1024}" for dt in range(4) for t in range(2)]
    return [xr[0]] + wr(0) + [xr[1]] + wr(1)
def q_mfmas(c, buf):
    wk, wb = WF[buf]; xb = XF[buf]
    return [f"{MF} {R('v', vQA+16*dt, 16)}, {R(wk, wb+(ks*4+dt)*4, 4)}, {R('v', xb+4*ks, 4)}, {'0' if (c % 20 == 0 and ks == 0) else R('v', vQA+16*dt, 16)}"
            for ks in range(2) for dt in range(4)]
def o_read(slot, ks, ct, buf, idx):
    k, b = OFL[buf][idx]
    base = slot * 10240
    areg = (aO, aO2, aO3)[base // 61440]; base %= 61440
    return [f"ds_read_b64_tr_b16 {R(k, b+2*t, 2)}, v{areg} offset:{base+ks*5120+t*1280+ct*64}" for t in range(2)]
HSEQ = [(-1, 0), (-1, 1), (0, 0), (1, 0), (2, 0), (0, 1), (1, 1), (2, 1)]
def bfrag(e, ks):
    p, r = HSEQ[e >> 2]; i = 2 * (e & 3) + ks
    if r == 0: return ('a', (AO1, 128, 160, 192)[p + 1] + 4 * i)
    if p < 0: return ('v', vPK + 4 * i)
    return PB2[8 * p + i]
def peer_loads(h):
    p, r = HSEQ[h]; ops = []
    pre = [f"s_add_u32 s{sT3}, s{sHH}, {p+1}", f"s_and_b32 s{sT3}, s{sT3}, 3", f"s_mul_i32 s{sT3}, s{sT3}, 49152",
           f"s_add_u32 s{sT3}, s{sT3}, s{sO0}"] + ([f"s_add_u32 s{sT3}, s{sT3}, 24576"] if r else [])
    for cc in range(4):
        if cc: pre = [f"s_add_u32 s{sT3}, s{sT3}, 6144"]
        for ks in range(2):
            k, b = bfrag(4 * h + cc, ks)
            ops.append((pre if ks == 0 else [], f"L{4*h+cc}", f"buffer_load_dwordx4 {R(k, b, 4)}, v{vL16}, s[{sWS}:{sWS+3}], s{sT3} offen offset:{ks*1024} sc1"))
    return ops
def o_mfma(e, ks, ct, buf, idx):
    k, b = OFL[buf][idx]; bk, bb = bfrag(e, ks)
    return f"{MF} {R('v', vOA+16*ct, 16)}, {R(k, b, 4)}, {R(bk, bb, 4)}, {'0' if (e == 0 and ks == 0) else R('v', vOA+16*ct, 16)}"

def norm_ops(dt, tmp, pkd, pk):
    ops = [f"v_accvgpr_read_b32 v{tmp+j}, a{AO+16*dt+j}" for j in range(16)]
    if pk: ops += [f"v_pk_mul_f32 v[{tmp+2*m}:{tmp+2*m+1}], v[{tmp+2*m}:{tmp+2*m+1}], v[{vR}:{vR+1}] op_sel_hi:[1,0]" for m in range(8)]
    else: ops += [f"v_mul_f32 v{tmp+j}, v{tmp+j}, v{vR}" for j in range(16)]
    ops += [f"v_cvt_pk_bf16_f32 v{pkd+m}, v{tmp+2*m}, v{tmp+2*m+1}" for m in range(8)]
    return ops

class Plan:
    def __init__(self, o):
        self.o = o
        M0 = self.M0 = 20
        qpat = o.get("qpat", [0, 1, 1, 2, 1, 2, 1, 2, 1, 2, 1, 2, 1, 2, 1])
        assert sum(qpat) == 20 and len(qpat) <= 15
        self.qch = {}; c = 20
        for n, k in enumerate(qpat):
            self.qch[n] = list(range(c, c + k)); c += k
        ol = o.get("olist", [19, 21, 23, 25])
        self.och = {n: c for c, n in enumerate(ol)}
        self.NOM = len(ol); assert 0 <= self.NOM <= 4
        self.tV15 = M0 + 32
        self.NCT = o.get("nct", 4)
        it = self.items = {}
        def add(key, need, last, lo, sz, nl): it[key] = dict(need=need, last=last, lo=lo, hi=lo + sz, nl=nl)
        wt = {c: c for c in range(20)}
        for n, cs in self.qch.items():
            for c in cs: wt[c] = M0 + n
        for c in range(40): add(("W", c), wt[c], wt[c], WB + (c % NW) * 8192, 8192, 8)
        for m in range(20):
            for h in range(2): add(("X", 2 * m + h), wt[2*m], wt[2*m+1], XB + (m % NX) * 12288 + h * 6144, 6144, 6)
        for i in range(16):
            t = M0 + max(0, 2 * i - 1); add(("K", i), t, t, KB + (i % NK) * 16384, 16384, 16)
            t = M0 + 2 * i + 2; add(("V", i), t, t, VB + (i % NV if i < 15 else V15SLOT) * 16384, 16384, 16)
        add(("N", 0), M0 + 15, M0 + 15, NONCE_LDS, 16, 0)
        def free_at(lo, hi):
            return max([v["last"] + 2 for v in it.values() if v["lo"] < hi and lo < v["hi"]] + [0])
        self.oslot = {}
        ot = {c: M0 + n for n, c in self.och.items()}
        for e in range(32):
            s = min(range(16), key=lambda s: (free_at(s * 10240, s * 10240 + 10240), s))
            if e < self.NOM: need = last = ot[e]
            elif e < 32 - self.NCT: need = last = self.tV15 + e - self.NOM
            else: need, last = self.tV15 + 32 - self.NCT - self.NOM, 999
            self.oslot[e] = s
            add(("O", e), need, last, s * 10240, 10240, 10)
        for k, v in it.items():
            v["free"] = max([w["last"] + 2 for kk, w in it.items() if kk != k and w["lo"] < v["hi"] and v["lo"] < w["hi"] and w["last"] < v["need"]] + [0])
            assert v["free"] <= v["need"], (k, v)
            for kk, w in it.items():
                if kk != k and w["lo"] < v["hi"] and v["lo"] < w["hi"]:
                    assert w["last"] < v["need"] or v["last"] < w["need"], (k, kk)
        self.pos = {v: self.place(v) for v in "ED"}
        self.Tend = max(max(p.values()) for p in self.pos.values()) + o.get("tendgap", 1)
        self.Tend = max(self.Tend, self.tV15 + 1 + o.get("kc2", 9))
        self.Tend = max(self.Tend, self.tV15 + 19 - self.NOM)
        for k, v in it.items(): v["need"] = min(v["need"], self.Tend)
        self.NT = self.Tend + 1
        lastuser = {}
        for e in range(32): lastuser[self.oslot[e]] = e
        self.freeslots = [sl for sl, e in lastuser.items() if it[("O", e)]["last"] < self.Tend]

    def place(self, variant):
        o, it, M0 = self.o, self.items, self.M0
        pos = {}
        pre = o.get("pre" + variant, o.get("pre", {("K", 0): 3, ("K", 1): 7, ("V", 0): 11, ("K", 2): 15, ("V", 1): 19}))
        pos.update(pre)
        DW, DX, DH = o.get("DW", 4), o.get("DX", 4), o.get("DH", 4)
        prev = 0
        for c in range(40):
            v = it[("W", c)]; prev = pos[("W", c)] = max(v["free"], v["need"] - (DW if c < 20 else DH) + 1, prev)
        prev = 0
        for c in range(40):
            v = it[("X", c)]; prev = pos[("X", c)] = max(v["free"] + (c & 1 if 4 <= c < 20 else 0), v["need"] - (DX if c < 20 else DH) + 1 + (c & 1 if c < 20 else 0), prev)
        for k, v in o.get("force", {("X", 2): 1, ("X", 3): 1, ("W", 2): 1, ("W", 3): 2, ("X", 4): 2, ("W", 4): 2}).items(): pos[k] = v
        DKV = o.get("DKV", 3); parK = o.get("parK", 0)
        for typ in "KV":
            prev = 0
            for i in range(16):
                if (typ, i) in pos: prev = pos[(typ, i)]; continue
                v = it[(typ, i)]
                lo = max(v["free"], prev, M0 - 2)
                unclump = i >= o.get("unclump_from", 99)
                cand = [s for s in range(lo, v["need"]) if unclump or (s - M0 - parK) % 2 == 0]
                good = [s for s in cand if s <= v["need"] - DKV + 1]
                prev = pos[(typ, i)] = good[-1] if good else (cand[0] if cand else lo)
        pos[("V", 15)] = max(it[("V", 15)]["free"], pos[("V", 14)] + o.get("v15gap", 0))
        ostart = M0 + o.get("ostart", 17); pace = o.get("opace", 1); tpace = o.get("tpace", 1)
        q0 = pos[("V", 15)] + 1
        rates = o.get("trates", {0: 2, 1: 3, 2: 0, 3: 0, 4: 0, 5: 0, 6: 0, 7: 2, 8: 2, 9: 2, 10: 2})
        s = ostart; k = 0
        for e in range(32):
            v = it[("O", e)]
            while True:
                if s - self.tV15 in rates: lim = rates[s - self.tV15]
                elif s < q0: lim = pace
                elif s < self.tV15: lim = 0
                else: lim = tpace
                if s >= v["free"] and (k < lim or s >= v["need"] - 1): break
                s += 1; k = 0
            assert s <= v["need"], (e, s, v)
            pos[("O", e)] = s; k += 1
        for k, s in pos.items(): assert it[k]["free"] <= s <= it[k]["need"], (k, s, it[k])
        return pos

    def schedule(self, variant):
        o, it, M0 = self.o, self.items, self.M0
        pos = self.pos[variant]
        sched = [[] for _ in range(self.NT + 1)]
        def key(x): return (int(x[0] in "KV") * (-1 if pos[x] == 0 else 1), it[x]["need"], x[0] != "X", x[1])
        for x in sorted(pos, key=key): sched[pos[x]].append(x)
        need = {k: v["need"] for k, v in it.items()}
        sched[M0 + o.get("nG", 5)].insert(0, ("G", 0))
        sched[M0 + 15].append(("CG", 0))
        polls = [(M0 + o.get("nP1", 24), M0 + o.get("nC1", 25), 1, 1), (self.tV15 + 1 + o.get("kp2", 7), self.tV15 + 1 + o.get("kc2", 9), 1, 2)]
        for k, (tp, tc, line, val) in enumerate(polls):
            assert tc <= self.Tend
            sched[tp].insert(0, ("F", line)); sched[tc].append(("CF", (line, val)))
        for k, tt in enumerate(o.get("touch" + variant, o.get("touch", [M0 + 4, M0 + 6, M0 + 8, M0 + 10, M0 + 12]))):
            if tt == 0: sched[0].insert(k, ("T", k))
            else: sched[tt].append(("T", k))
            need[("T", k)] = 999
        if o.get("det"):
            sched[1].insert(0, ("DW", 0))
            sched[o["det"][0]].append(("DT", "K")); sched[o["det"][1]].append(("DT", "V"))
        for tt, u in o.get("itouch", []):
            sched[tt].insert(0, ("I", u)); need[("I", u)] = 999
        for k, tt in enumerate(o.get("touchq" + variant, o.get("touchq", []))):
            if tt == 0: sched[0].insert(k, ("U", k))
            else: sched[tt].append(("U", k))
            need[("U", k)] = 999
        return sched, need

vK, vV, vW, vX, vO = 4, 8, 9, 13, 17

def wrap(a, sg, send, span):
    a(f"s_cmp_ge_u32 s{sg}, s{send}")
    a(f"s_cselect_b32 s{sT0}, {span}, 0")
    a(f"s_sub_u32 s{sg}, s{sg}, s{sT0}")

def body_W(a, o):
    pol = o.get("wpol", ""); on = "W" not in o.get("nodma", "")
    for g in range(2):
        so = sWg
        if g:
            a("s_add_u32 m0, m0, 4096"); a(f"s_add_u32 s{sT0}, s{sWg}, {16*8192}"); so = sT0
        for p in range(4):
            if on: a(f"buffer_load_dwordx4 v{vW+p}, s[{sW}:{sW+3}], s{so} offen offset:{p*1024}{pol} lds")
    a(f"s_add_u32 s{sWg}, s{sWg}, {32*8192}"); wrap(a, sWg, sWend, 640 * 8192)
def body_X(a, o, h):
    pol = o.get("xpol", ""); on = "X" not in o.get("nodma", "")
    def ld(p, so):
        if on: a(f"buffer_load_dwordx4 v{vX+p}, s[{sX}:{sX+3}], s{so} offen offset:{p*1024}{pol} lds")
    if h == 0:
        for p in range(4): ld(p, sXg)
        a("s_add_u32 m0, m0, 4096"); a(f"s_add_u32 s{sT0}, s{sXg}, {32*1280}")
        for p in range(2): ld(p, sT0)
    else:
        a(f"s_add_u32 s{sT0}, s{sXg}, {32*1280}")
        for p in range(2, 4): ld(p, sT0)
        a("s_add_u32 m0, m0, 4096"); a(f"s_add_u32 s{sT0}, s{sXg}, {64*1280}")
        for p in range(4): ld(p, sT0)
        a(f"s_add_u32 s{sXg}, s{sXg}, 128"); wrap(a, sXg, sXend, 1280)

def emit_loader_schedule(a, P, variant, st, o):
    sched, need = P.schedule(variant)
    it = P.items
    issued = []; total = 0
    tlate = o.get("tlate" + variant, o.get("tlate", 0))
    for t in range(P.NT):
        if t == 0 and tlate < 0: a(f"s_call_b64 s[{sRET}:{sRET+1}], L_late_setup")
        for x in sched[t]:
            ty, c = x
            if ty in o.get("skip2", "") and ty in "WX" and c >= 20: continue
            if ty == "DW":
                a(f"s_load_dword s72, s[{sK}:{sK+1}], s{sKg}")
                a(f"s_load_dword s73, s[{sV}:{sV+1}], s{sVg}")
                continue
            if ty == "DT":
                base, sg, sx = (sK, sKg, sKo) if c == "K" else (sV, sVg, sVo)
                regs = [72, 73, 74, 75, 76, 77, 88, 89, 90, 91, 92, 93]
                a("s_waitcnt lgkmcnt(0)")
                a(f"s_and_b32 s{sT1}, s{sg}, 0xfffc0000")
                a(f"s_add_u32 s94, s{base}, s{sT1}")
                a(f"s_addc_u32 s95, s{base+1}, 0")
                for r in regs: a(f"s_mov_b32 s{r}, 0x7fc1a5a5")
                for i, r in enumerate(regs):
                    half = (i & 1) ^ ((i >> 1) & 1)
                    a(f"s_load_dword s{r}, s[94:95], {0x20000 + (i >> 1) * 0x5000 // 0x4000 * 0x4000 + ((i >> 1) & 1) * 0x1000 + half * 0x2000 + 0x880 + i * 0}")
                a("s_waitcnt lgkmcnt(6)")
                a(f"s_mov_b32 s{sT0}, 0")
                for i, r in enumerate(regs):
                    half = (i & 1) ^ ((i >> 1) & 1)
                    a(f"s_cmp_lg_u32 s{r}, 0x7fc1a5a5")
                    a(f"s_{'subb' if half else 'addc'}_u32 s{sT0}, s{sT0}, 0")
                a(f"s_cmp_lt_i32 s{sT0}, 0")
                a(f"s_cselect_b32 s{sx}, 0x2000, 0")
                if st.on: a(f"s_mov_b32 s{66 if c == 'K' else 68}, s{sT0}"); a(f"s_mov_b32 s{67 if c == 'K' else 69}, 0")
                continue
            if ty == "G":
                a("s_waitcnt lgkmcnt(0)")
                a(f"s_load_dwordx4 s[72:75], s[{sDBG}:{sDBG+1}], s{sCL} glc"); continue
            if ty == "CG":
                lab = a.newlabel("L_cg")
                a("s_waitcnt lgkmcnt(0)")
                a("s_cmp_eq_u32 s72, 1")
                a(f"s_cbranch_scc1 {lab}")
                a(f"s_call_b64 s[{sRET}:{sRET+1}], L_spinG")
                a.label(lab)
                a("v_mov_b32 v36, s73")
                a("v_mov_b32 v37, s74")
                a(f"v_mov_b32 v38, {NONCE_LDS}")
                a("ds_write_b64 v38, v[36:37]")
                a("s_waitcnt lgkmcnt(0)")
                continue
            if ty == "F":
                sl = sF1 if c == 1 else sF2
                a(f"s_add_u32 s{sT1}, s{sl}, 32")
                a(f"s_load_dwordx8 s[88:95], s[{sWS}:{sWS+1}], s{sl} glc")
                a(f"s_load_dwordx4 s[72:75], s[{sWS}:{sWS+1}], s{sT1} glc"); continue
            if ty == "CF":
                a(f"s_mov_b32 s{sT1}, s{sF1 if c[0] == 1 else sF2}")
                a(f"s_mov_b32 s76, {c[1]}")
                a(f"s_call_b64 s[{sRET}:{sRET+1}], L_chkF")
                continue
            if ty == "I":
                a(f"v_add_u32 v24, {c*8192}, v23")
                a(f"v_min_u32 v24, s{sEX}, v24")
                a(f"global_load_dword v28, v24, s[{sPC}:{sPC+1}]"); n = 1
            elif ty == "T":
                a(f"buffer_load_dword v28, v23, s[{sWO}:{sWO+3}], s{sT3} offen{o.get('tpol','')}")
                a(f"s_add_u32 s{sT3}, s{sT3}, 8192"); n = 1
            elif ty == "U":
                if c == 2 and not o.get("dtouch"): a("s_mov_b32 exec_hi, 0")
                a(f"buffer_load_dword v28, v2, s[{sW}:{sW+3}], s{sT2} offen{o.get('upol','')}")
                if c == 2 and not o.get("dtouch"): a("s_mov_b32 exec_hi, -1")
                a(f"s_add_u32 s{sT2}, s{sT2}, {8*8192}"); n = 1
            else:
                lo = it[x]["lo"]
                if ty == "X" and c & 1: lo = lo - 6144 + 4096
                a(f"s_mov_b32 m0, {lo}")
                if ty in "KV" and c == 8 and not o.get("pat"):
                    a(f"s_add_u32 s{sKg if ty == 'K' else sVg}, s{sKg if ty == 'K' else sVg}, 0x20000")
                if ty == "W" and c == 20:
                    a(f"s_add_u32 s{sWg}, s{sWg}, 256")
                    a(f"s_add_u32 s{sWend}, s{sWend}, 256")
                if ty == "O" and c % 4 == 0:
                    p, r = HSEQ[c >> 2]
                    a(f"s_add_u32 s{sT0}, s{sHH}, {p+1}")
                    a(f"s_and_b32 s{sT0}, s{sT0}, 3")
                    a(f"s_mul_i32 s{sT0}, s{sT0}, {256*1280}")
                    a(f"s_add_u32 s{sOg}, s{sObase}, s{sT0}")
                    if r: a(f"s_add_u32 s{sOg}, s{sOg}, {128*1280}")
                if ty in "WX" and c < 20 and o.get("inline", 1):
                    if ty == "W": a("s_nop 0"); body_W(a, o)
                    else:
                        if not c & 1: a("s_nop 0")
                        body_X(a, o, c & 1)
                else:
                    tt = "t" if (ty in "KV" and o.get("thr") and o.get("thr0", 34) <= t <= o.get("thr1", 99)) else ""
                    a(f"s_call_b64 s[{sRET}:{sRET+1}], L_iss{ty}{c & 1 if ty == 'X' else ''}{tt}")
                n = it[x]["nl"]
            total += n; issued.append((x, total))
            if t == 0 and x == ("W", 0): st.stamp(a, 1)
        if t == 0: st.stamp(a, 2)
        if t == tlate: a(f"s_call_b64 s[{sRET}:{sRET+1}], L_late_setup")
        req = max(c for x, c in issued if need[x] <= t)
        tr = o.get("trace", 0)
        if tr and t > 0:
            a("s_waitcnt lgkmcnt(0)")
            a(f"v_writelane_b32 v{30 if t-1 < 64 else 33}, s80, {(t-1) % 64}")
            if tr > 1: a("s_memrealtime s[82:83]")
        a(f"s_waitcnt vmcnt({min(63, total - req)})")
        if tr > 1 and t > 0:
            a("s_memrealtime s[84:85]")
            a("s_waitcnt lgkmcnt(0)")
            a(f"v_writelane_b32 v{31 if t < 64 else 34}, s82, {t % 64}")
            a(f"v_writelane_b32 v{32 if t < 64 else 35}, s84, {t % 64}")
        a("s_barrier")
        if tr: a("s_memrealtime s[80:81]")
    if o.get("trace", 0):
        a("s_waitcnt lgkmcnt(0)")
        a(f"v_writelane_b32 v{30 if P.NT-1 < 64 else 33}, s80, {(P.NT-1) % 64}")

def gen_middle(a, P, o, st):
    NA = o.get("NA", 24)
    WS = f"s[{sWS}:{sWS+3}]"
    def hooks(n):
        for cc, nn in enumerate(o.get("nS1", [19, 19, 19, 19])):
            if n == nn:
                a(f"s_add_u32 s{sT0}, s{sOoff}, {cc*6144}")
                for u in range(2):
                    a(f"buffer_store_dwordx4 {R('a', AO1+8*cc+4*u, 4)}, v{vL16}, {WS}, s{sT0} offen offset:{u*1024} sc1")
        if n == 15:
            a(f"v_mov_b32 v{vH}, {NONCE_LDS}")
            a(f"ds_read_b64 v[18:19], v{vH}")
        if n == 16:
            a(f"v_and_b32 v{vH}, 4, v0")
            a(f"v_cmp_eq_u32 vcc, 0, v{vH}")
            a(f"v_and_b32 v{vH}, 3, v0")
            a(f"v_lshlrev_b32 v{vH}, 3, v{vH}")
            a("v_cndmask_b32 v18, v19, v18, vcc")
            a(f"v_lshrrev_b32 v{vT}, v{vH}, v18")
            for d in range(4):
                a(f"v_bfe_u32 v{vTG+d}, v{vT}, {2*d}, 1")
                a(f"v_bfe_u32 v{vT+1}, v{vT}, {2*d+1}, 1")
                a(f"v_lshl_or_b32 v{vTG+d}, v{vT+1}, 16, v{vTG+d}")
            a(f"v_mov_b32 v{vH}, 0x8000")
        if n == o.get("nF1", 22):
            a(f"v_mov_b32 v{vT}, 1")
            a("s_waitcnt vmcnt(0)")
            a(f"buffer_store_dword v{vT}, v{vZ}, {WS}, s{sF1} offen sc1")
    def projparts(n):
        rd, mf = [], []
        for k, c in enumerate(P.qch.get(n, [])):
            rd += q_reads(c, k); mf += q_mfmas(c, k)
        if n in P.och:
            e = P.och[n]
            for ks in range(2):
                for ct in range(5):
                    rd += o_read(P.oslot[e], ks, ct, 0, ks * 5 + ct); mf.append(o_mfma(e, ks, ct, 0, ks * 5 + ct))
        return rd, mf
    assert not P.qch.get(0)
    a("s_barrier")
    emit_tick(a, q_mfmas(19, 1), spread(k_reads(0), 6))
    st.stamp(a, 1)
    pad(a, o, 1)
    a(f"s_cmp_lg_u32 s{sLEAD}, 0")
    a("s_cbranch_scc1 L_noann")
    a(f"s_lshl_b32 s{sT0}, s{sCL}, 4")
    a("s_mul_i32 s62, s60, 0x9E3779B1")
    a("s_mul_i32 s60, s60, 0x85EBCA6B")
    a("s_add_u32 s60, s60, s61")
    a("v_mov_b32 v32, 1")
    a("v_mov_b32 v33, s62")
    a("v_mov_b32 v34, s60")
    a("v_mov_b32 v35, 0")
    a(f"buffer_store_dwordx4 v[32:35], v{vZ}, s[{sDBG}:{sDBG+3}], s{sT0} offen sc1")
    a.label("L_noann")
    a("s_nop 7")
    cv = q_convert_ops(AQ[0], True)
    qk = qk_mfmas(0)
    a("s_waitcnt lgkmcnt(0)")
    for t in cv[:24]: a(t)
    for dt in range(4):
        ms = [qk[2*dt], qk[8+2*dt], qk[2*dt+1], qk[8+2*dt+1]]
        a("s_nop 1")
        emit_tick(a, ms, spread(cv[24*(dt+1):24*(dt+2)], 4) if dt < 3 else [])
    pr, pm = projparts(1)
    a("s_barrier")
    val = init_ops(vS[0])
    if pm: emit_tick(a, pm, spread(val[20:], len(pm)), pre=pr + k_reads(1) + val[:20])
    else: emit_tick(a, [], [], pre=k_reads(1) + val)
    a("s_waitcnt lgkmcnt(0)")
    for i in range(15):
        cur, nxt = i & 1, (i + 1) & 1
        n = 2 * i + 2
        pr, pm = projparts(n)
        prB, pmB = projparts(n + 1)
        na = NA if pm else o.get("NA0", 20)
        a("s_barrier")
        if i == 8: st.stamp(a, 2)
        ng = 16 + len(pm)
        fs = [spread(pr + v_reads(i % NV), ng - 2 if pm else ng)]
        sm = softmax_ops(vS[cur], 0, na)
        if i == 8:
            assert not pm
            fin = []
            for dt in range(4):
                fin += norm_ops(dt, 240, 208, True) + [f"v_accvgpr_write_b32 a{AO1+8*dt+m}, v{208+m}" for m in range(8)]
            fin += [f"v_add_u32 v{aO2}, 61440, v{aO}", f"v_add_u32 v{aO3}, 122880, v{aO}", f"v_and_b32 v{vPO}, 3, v0", f"v_lshlrev_b32 v{vPO}, 2, v{vPO}"]
            fs.append(spread(fin, ng)); fs.append(spread(sm, ng))
        else:
            fs.append(spread(sm, ng))
        emit_tick(a, qk_mfmas(i + 1) + pm, merge(*fs))
        hooks(n)
        a("s_waitcnt lgkmcnt(0)")
        n = 2 * i + 3
        pr, pm = prB, pmB
        a("s_barrier")
        ng = 16 + len(pm)
        kr = k_reads((i + 2) % NK) if i < 14 else []
        fs = [spread(pr + kr, ng - 2 if kr else 12)] if (pr or kr) else []
        fs.append(spread(softmax_ops(vS[cur], na, 32), 10 if na >= 24 else 11))
        if i == 6:
            assert not pm
            fs.append(spread(q_convert_ops(AQ[1], False), ng, start=1)); fs.append(spread(max_ops(vS[nxt]), ng, start=10))
        elif i == 7:
            io = init_ops(vS[nxt])
            fs.append(spread(io[:16], 11, start=3)); fs.append(spread(io[16:] + lfin_ops(), ng, start=11))
        else:
            fs.append(spread(max_ops(vS[nxt]), ng, start=10))
        emit_tick(a, pv_mfmas(i) + pm, merge(*fs))
        if i != 7: rare_check(a, nxt)
        if i == 14:
            for x in softmax_ops(vS[nxt], 0, 32) + lfin_ops()[:-2]: a(x if isinstance(x, str) else x[0])
        hooks(n)
        a("s_waitcnt lgkmcnt(0)")

class VM:
    def __init__(self, a): self.a = a; self.ops = []; self.done = 0
    def op(self, name, text): self.ops.append(name); return text
    def wait(self, name):
        k = max(i for i, n in enumerate(self.ops) if n == name) + 1
        if k > self.done:
            n = len(self.ops) - k; assert n <= 63
            self.a(f"s_waitcnt vmcnt({n})"); self.done = k

def gen_tail(a, P, o, st):
    vm = VM(a)
    WS = f"s[{sWS}:{sWS+3}]"
    c0 = P.NOM; NCT = P.NCT; eCT = 32 - NCT
    sent = o.get("sent", 1)
    def flag(soff, val, name):
        a(f"v_mov_b32 v{vT}, {val}")
        a(vm.op(name, f"buffer_store_dword v{vT}, v{vZ}, {WS}, s{soff} offen sc1"))
    def poll_issue(sline, name, reg):
        a(f"s_and_b32 s{sT1}, s{sline}, 0xfffffff3")
        a(vm.op(name, f"buffer_load_dword v{reg}, v{vPO}, {WS}, s{sT1} offen sc1"))
    def poll_check(sline, name, reg, val):
        if name: vm.wait(name)
        ok = a.newlabel("L_pok")
        a(f"v_cmp_gt_u32 vcc, {val}, v{reg}")
        a(f"s_cbranch_vccz {ok}")
        a(f"s_and_b32 s{sT1}, s{sline}, 0xfffffff3")
        a(f"s_mov_b32 s{sT2}, {val}")
        a(f"s_call_b64 s[{sRET}:{sRET+1}], L_spinA")
        a.label(ok)
    nF1, nC1 = o.get("nF1", 22), o.get("nC1", 25)
    assert nF1 < nC1
    vm.ops.append("S1")
    L1 = peer_loads(2) + peer_loads(3) + peer_loads(4)
    queue = []
    if nC1 <= 31:
        npre = o.get("npre", 8); assert npre <= 16
        for pre, nm, tx in L1[:npre]:
            for t in pre: a(t)
            a(vm.op(nm, tx))
        queue = L1[npre:]
    tick = [P.tV15]
    def barrier():
        if tick[0] <= P.Tend: a("s_barrier")
        tick[0] += 1
    barrier()
    st.stamp(a, 3)
    pad(a, o, 3)
    if nF1 == 32: vm.wait("S1"); flag(sF1, 1, "F1a")
    groups = [[(e, ks, ct) for ks in range(2) for ct in range(5)] for e in range(c0, eCT)]
    NSUB = (2 * NCT + 9) // 10
    for ct in range(5):
        l = [(e, ks, ct) for e in range(eCT, 32) for ks in range(2)]
        n_ = len(l) // NSUB
        groups += [l[i*n_:(i+1)*n_] for i in range(NSUB)]
    def greads(g): return sum((o_read(P.oslot[e], ks, ct, g & 1, i) for i, (e, ks, ct) in enumerate(groups[g])), [])
    def gmf(g): return [o_mfma(e, ks, ct, g & 1, i) for i, (e, ks, ct) in enumerate(groups[g])]
    vr_ = v_reads(V15SLOT, True)
    fin = []
    for dt in range(4):
        f = norm_ops(dt, 64 + 16 * (dt & 1), vPK + 8 * dt, True) + [f"s_add_u32 s{sT0}, s{sOoff}, {24576+dt*6144}"]
        f += [f"buffer_store_dwordx4 {R('v', vPK+8*dt+4*u, 4)}, v{vL16}, {WS}, s{sT0} offen offset:{u*1024} sc1" for u in range(2)]
        if dt < 2 or not o.get("finov", 1): vm.ops += ["S2", "S2"]
        fin.append(f)
    fl = merge(spread(vr_[10:] + greads(0), 12), spread(fin[0], 12, start=8), spread(fin[1], 16, start=12))
    emit_tick(a, pv_mfmas(15, True), fl, pre=vr_[:10])
    post = []
    if o.get("finov", 1):
        post0 = fin[2] + fin[3]
    else:
        for t in fin[2] + fin[3]: a(t)
        post0 = []
    st.stamp(a, 4)
    a("s_waitcnt lgkmcnt(0)")
    vPA, vOUT, vST, vLW, vLR = 3, 6, 9, 10, (11, 12, 2)
    sLm = 60
    fs_ = P.freeslots; assert len(fs_) >= 3
    ex = []
    for i in range(3):
        ex += [f"v_add_u32 v{vM0}, {64*i}, v0" if i < 2 else f"v_and_or_b32 v{vM0}, v0, 31, s{sT2}",
               f"v_lshrrev_b32 v{vM1}, 3, v{vM0}", f"v_and_b32 v{vM0}, 7, v{vM0}",
               f"v_lshlrev_b32 v{vPA+i}, 9, v{vM1}", f"v_lshl_add_u32 v{vPA+i}, v{vM0}, 4, v{vPA+i}",
               f"v_mul_u32_u24 v{vOUT+i}, 2560, v{vM0}", f"v_lshl_add_u32 v{vOUT+i}, v{vM1}, 4, v{vOUT+i}"]
    ex.insert(14, f"s_mov_b32 s{sT2}, 128")
    ex += [f"v_and_b32 v{vM0}, 32, v0", f"v_lshl_or_b32 v{vOUT+2}, v{vM0}, 25, v{vOUT+2}",
           f"v_bfe_u32 v{vM0}, v0, 3, 2", f"v_cmp_eq_u32 vcc, s{sJ}, v{vM0}", f"v_mov_b32 v{vM1}, 0x40000000",
           f"s_cmp_eq_u32 s{sWAVE}, 1", f"s_cselect_b32 s{sT2}, {fs_[1]*10240}, {fs_[0]*10240}" if False else f"s_mov_b32 s{sT2}, {fs_[0]*10240}",
           f"v_cndmask_b32 v{vST}, v{vL16}, v{vM1}, vcc",
           f"s_cselect_b32 s{sT2}, {fs_[1]*10240}, s{sT2}", f"s_cmp_eq_u32 s{sWAVE}, 2", f"s_cselect_b32 s{sT2}, {fs_[2]*10240}, s{sT2}",
           f"v_add_u32 v{vLW}, s{sT2}, v{vL16}", f"s_lshl_b32 s{sT1}, s{sJ}, 7", f"s_add_u32 s{sT2}, s{sT2}, s{sT1}"]
    ex += [f"v_add_u32 v{vLR[i]}, s{sT2}, v{vPA+i}" for i in range(3)] + [f"s_mov_b32 s{sLm}, 0x00010001"]
    k2 = 20 - c0
    kl1 = o.get("kl1", 1)
    kf2 = o.get("kf2", 5); kp2 = o.get("kp2", 7); kc2 = o.get("kc2", 9)
    assert kf2 < kc2
    lrate = o.get("lrate", 4)
    NG = len(groups)
    for g in range(NG):
        if g < eCT - c0: barrier()
        if g + 33 == nF1: vm.wait("S1"); flag(sF1, 1, "F1a")
        if g + 33 == nC1: queue += L1
        if g == kf2: vm.wait("S2"); flag(sF1, 2, "F1b"); st.stamp(a, 5)
        if g == kc2: queue += peer_loads(5) + peer_loads(6) + peer_loads(7); st.stamp(a, 6)
        for e in sorted(set(x[0] for x in groups[g])):
            if HSEQ[e >> 2][0] >= 0: vm.wait(f"L{e}")
        if g == k2: st.stamp(a, 7)
        m = gmf(g)
        fls = [spread(greads(g + 1), len(m) - 1)] if g + 1 < NG else [[[]]]
        if g == 0 and post0:
            fls.append(spread(post0, len(m))); vm.ops += ["S2"] * 4
            assert kl1 >= 1
        if g == k2 + 2:
            assert not queue
            fls.append(spread(ex[:22], len(m)))
        if g == k2 + 3: fls.append(spread(ex[22:], len(m)))
        if g >= kl1:
            lr = (o.get("lprime", 8) if g == kc2 else o.get("lrate2", 3)) if g >= kc2 else (o.get("lprime", 8) if g + 33 == nC1 else lrate)
            take, queue = queue[:lr], queue[lr:]
            if take: fls.append(spread(sum((pre + [vm.op(nm, tx)] for pre, nm, tx in take), []), len(m)))
        if post: fls.append(spread((["s_nop 5"] if g + 1 == NG else []) + post, len(m), start=min(3, len(m) - 1))); post = []
        emit_tick(a, m, merge(*fls))
        a("s_waitcnt lgkmcnt(0)")
        if g >= eCT - c0 and (g - (eCT - c0)) % NSUB == NSUB - 1:
            ct = (g - (eCT - c0)) // NSUB; b = vOA + 16 * ct
            post = [f"v_cvt_pk_bf16_f32 v{32+8*ct+mm}, v{b+2*mm}, v{b+2*mm+1}" for mm in range(8)]
            post += [f"ds_write_b128 v{vLW}, {R('v', 32+8*ct+4*u, 4)} offset:{(2*ct+u)*1024}" for u in range(2)]
            post += [f"v_bfi_b32 v{32+8*ct+mm}, s{sLm}, v{vTG+(mm&3)}, v{32+8*ct+mm}" for mm in range(8)]
            post += [f"s_add_u32 s{sT0}, s{sPoff}, {ct*2048}"]
            post += [vm.op("SP", f"buffer_store_dwordx4 {R('v', 32+8*ct+4*u, 4)}, v{vST}, {WS}, s{sT0} offen offset:{u*1024} sc1") for u in range(2)]
    assert not queue
    st.stamp(a, 8)
    a("s_nop 10")
    for t in post: a(t)
    SRC, OWN, ACC, TMP, RES = 72, 108, 128, 152, 176
    sS = (61, 62, 63)
    def sload(s_):
        for i in range(3):
            a(f"buffer_load_dwordx4 {R('v', SRC+12*s_+4*i, 4)}, v{vPA+i}, {WS}, s{sS[s_]} offen sc1")
    for s_ in range(3):
        a(f"s_add_u32 s{sT0}, s{sJ}, {s_+1}")
        a(f"s_and_b32 s{sT0}, s{sT0}, 3")
        a(f"s_mul_i32 s{sT0}, s{sT0}, 30720")
        a(f"s_add_u32 s{sS[s_]}, s{sPr}, s{sT0}")
        sload(s_)
    for i in range(3): a(f"ds_read_b128 {R('v', OWN+4*i, 4)}, v{vLR[i]}")
    a(f"s_mov_b32 s{sT1}, 0")
    a("s_waitcnt lgkmcnt(0)")
    for k in range(12):
        a(f"v_lshlrev_b32 v{ACC+2*k}, 16, v{OWN+k}")
        a(f"v_and_b32 v{ACC+2*k+1}, s{sM16}, v{OWN+k}")
    for s_ in range(3):
        b = SRC + 12 * s_
        a(f"s_waitcnt vmcnt({6 - 3 * s_})")
        a(f"s_branch L_fc{s_}")
        a.label(f"L_fr{s_}")
        if o.get("fsleep"): a(f"s_sleep {o['fsleep']}")
        sload(s_)
        a(f"s_add_u32 s{sT1}, s{sT1}, 1")
        a(f"s_cmp_ge_u32 s{sT1}, {SPIN}")
        a(f"s_cbranch_scc1 L_fd{s_}")
        a("s_waitcnt vmcnt(0)")
        a.label(f"L_fc{s_}")
        for k in range(12): a(f"v_xor_b32 v{b+k}, v{vTG+(k&3)}, v{b+k}")
        a(f"v_or3_b32 v120, v{b}, v{b+1}, v{b+2}")
        for k in range(3, 11, 2): a(f"v_or3_b32 v120, v120, v{b+k}, v{b+k+1}")
        a(f"v_or_b32 v120, v120, v{b+11}")
        a(f"v_and_b32 v120, s{sLm}, v120")
        a("v_cmp_ne_u32 vcc, 0, v120")
        a(f"s_cbranch_vccnz L_fr{s_}")
        a.label(f"L_fd{s_}")
        if s_ == 2: st.stamp(a, 9)
        for i in range(3):
            for k in range(4 * i, 4 * i + 4):
                a(f"v_lshl_or_b32 v{TMP+2*k}, v{b+k}, 16, v{vH}")
                a(f"v_and_or_b32 v{TMP+2*k+1}, v{b+k}, s{sM16}, v{vH}")
            for k in range(4 * i, 4 * i + 4):
                a(f"v_pk_add_f32 v[{ACC+2*k}:{ACC+2*k+1}], v[{ACC+2*k}:{ACC+2*k+1}], v[{TMP+2*k}:{TMP+2*k+1}]")
            if s_ == 2:
                for k in range(4 * i, 4 * i + 4): a(f"v_cvt_pk_bf16_f32 v{RES+k}, v{ACC+2*k}, v{ACC+2*k+1}")
                a(f"buffer_store_dwordx4 {R('v', RES+4*i, 4)}, v{vOUT+i}, s[{sOUT}:{sOUT+3}], s{sOutB} offen{o.get('outpol',' sc1')}")

def gen_kernel(a, o):
    st = Stamps(o.get("stamps", 0))
    P = Plan(o)
    k = NAME + "_kernel"
    kernel_begin(a, k)
    a("s_cmp_ge_u32 s2, 256")
    a("s_cbranch_scc1 L_exit")
    st.stamp(a, 0)
    if o.get("sperm"): a(f"s_xor_b32 s2, s2, {o['sperm'] << 3}")
    if o.get("pad"): a("s_memrealtime s[84:85]")
    a(f"s_and_b32 s{sT0}, s2, 7")
    a(f"s_lshr_b32 s{sBLK}, s{sT0}, 2")
    a(f"s_mul_i32 s{sT1}, s{sBLK}, 40")
    a(f"s_add_u32 s{sEX}, s0, s{sT1}")
    a(f"s_addc_u32 s{sEX+1}, s1, 0")
    a(f"s_load_dwordx8 s[{sLD}:{sLD+7}], s[{sEX}:{sEX+1}], 0")
    a(f"s_load_dwordx2 s[{sWO}:{sWO+1}], s[{sEX}:{sEX+1}], 32")
    a(f"s_load_dwordx2 s[{sOUT}:{sOUT+1}], s[0:1], 80")
    a(f"s_load_dwordx2 s[{sDBG}:{sDBG+1}], s[0:1], 88")
    a(f"s_load_dwordx2 s[{sWS}:{sWS+1}], s[0:1], 96")
    a("v_lshrrev_b32 v1, 6, v0")
    a(f"s_and_b32 s{sJ}, s{sT0}, 3")
    a(f"v_readfirstlane_b32 s{sWAVE}, v1")
    a(f"s_lshr_b32 s{sT0}, s2, 3")
    a(f"s_and_b32 s{sB}, s{sT0}, 7")
    a(f"s_lshr_b32 s{sHH}, s{sT0}, 3")
    a(f"s_lshl_b32 s{sCL}, s{sBLK}, 3")
    a(f"s_add_u32 s{sCL}, s{sCL}, s{sB}")
    a(f"s_lshl_b32 s{sT1}, s{sJ}, 3")
    a(f"s_lshl_b32 s{sT0}, s{sHH}, 1")
    a(f"s_add_u32 s{sT1}, s{sT1}, s{sT0}")
    a(f"s_lshl_b32 s{sT2}, s{sB}, 5")
    a(f"s_add_u32 s{sT2}, s{sT2}, s{sT1}")
    a(f"s_cmp_eq_u32 s{sWAVE}, 3")
    a("s_cbranch_scc1 L_loader")
    a(f"s_getpc_b64 s[{sPC}:{sPC+1}]")
    a("L_pc:")
    a(f"s_mov_b32 s{sT0}, L_exit-L_pc")
    if o.get("pfshare", 1):
        a(f"s_lshr_b32 s{sT3}, s2, 3")
        a(f"s_lshl_b32 s{sT3}, s{sT3}, 7")
        a(f"v_lshlrev_b32 v2, 12, v0")
        a(f"v_add_u32 v2, s{sT3}, v2")
    else:
        a("v_lshlrev_b32 v2, 7, v0")
    for rep in range(1 if o.get("pfshare", 1) else 3):
        if rep: a("v_add_u32 v2, 24576, v2")
        a(f"v_cmp_gt_u32 vcc, s{sT0}, v2")
        a(f"s_and_saveexec_b64 s[{sRET}:{sRET+1}], vcc")
        a(f"s_cbranch_execz L_nopf{rep}")
        a(f"global_load_dword v47, v2, s[{sPC}:{sPC+1}]")
        a(f"L_nopf{rep}:")
        a(f"s_mov_b64 exec, s[{sRET}:{sRET+1}]")
    a("s_branch L_awave")
    a.label("L_loader")
    a("v_and_b32 v0, 63, v0")
    a("v_lshrrev_b32 v1, 3, v0")
    a("v_and_b32 v2, 7, v0")
    for p in range(2):
        a(f"v_add_u32 v3, {8*p}, v1")
        a("v_bfe_u32 v23, v3, 1, 3")
        a("v_xor_b32 v23, v23, v2")
        a("v_lshlrev_b32 v23, 4, v23")
        a("v_mul_u32_u24 v3, 1280, v3")
        a("v_add_u32 v23, v23, v3")
        a(f"v_subrev_u32 v{vX+p}, {p*1024}, v23")
        a(f"v_add_u32 v{vX+p+2}, {16*1280-2048}, v{vX+p}")
    a("v_lshrrev_b32 v1, 4, v0")
    a("v_and_b32 v2, 15, v0")
    a("v_lshlrev_b32 v3, 2, v1")
    a("v_xor_b32 v3, v3, v2")
    a("v_lshlrev_b32 v3, 4, v3")
    a(f"v_lshl_add_u32 v{vV}, v1, 8, v3")
    a(f"v_lshl_add_u32 v{vW}, v1, 13, v3")
    for p in range(1, 4): a(f"v_add_u32 v{vW+p}, {p*(4*8192-1024)}, v{vW}")
    a("v_xor_b32 v3, v1, v2")
    a("v_lshlrev_b32 v3, 4, v3")
    a(f"v_lshl_add_u32 v{vK}, v1, 8, v3")
    for p in range(1, 4): a(f"v_xor_b32 v{vK+p}, {p*64}, v{vK}")
    if o.get("rot", 1):
        a(f"s_mul_i32 s{sT0}, s{sB}, 5")
        a(f"s_lshr_b32 s{sT0}, s{sT0}, 2")
        a(f"s_mul_i32 s{sT3}, s{sHH}, 5")
        a(f"s_lshr_b32 s{sT3}, s{sT3}, 1")
        a(f"s_add_u32 s{sT0}, s{sT0}, s{sT3}")
        a(f"s_cmp_ge_u32 s{sT0}, 10")
        a(f"s_cselect_b32 s{sT3}, 10, 0")
        a(f"s_sub_u32 s{sT0}, s{sT0}, s{sT3}")
    else:
        a(f"s_mov_b32 s{sT0}, 0")
    a(f"s_lshl_b32 s{sWg}, s{sT1}, 8")
    a(f"s_add_u32 s{sWend}, s{sWg}, {640*8192}")
    a(f"s_lshl_b32 s{sT3}, s{sT0}, 19")
    a(f"s_add_u32 s{sWg}, s{sWg}, s{sT3}")
    a(f"s_mul_i32 s{sXg}, s{sB}, 122880")
    a(f"s_add_u32 s{sXend}, s{sXg}, 1280")
    a(f"s_lshl_b32 s{sT3}, s{sT0}, 7")
    a(f"s_add_u32 s{sXg}, s{sXg}, s{sT3}")
    a(f"s_lshl_b32 s{sKg}, s{sT2}, 17")
    a(f"s_mov_b32 s{sVg}, s{sKg}")
    kr = o.get("kvrot", 29)
    if kr:
        a(f"s_mul_i32 s{sKo}, s2, 0x9E3779B1")
        a(f"s_lshr_b32 s{sKo}, s{sKo}, {kr}")
        a(f"s_lshl_b32 s{sKo}, s{sKo}, 12")
    else:
        a(f"s_mov_b32 s{sKo}, 0")
    a(f"s_mov_b32 s{sVo}, s{sKo}")
    if o.get("pat"):
        a(f"s_lshr_b32 s{sKo}, s{sJ}, 1")
        a(f"s_xor_b32 s{sKo}, s{sKo}, s{sBLK}")
        a(f"s_xor_b32 s{sKo}, s{sKo}, {o.get('cpar', 0)}")
        a(f"s_lshl_b32 s{sKo}, s{sKo}, 13")
        if o.get("lowrnd"):
            a(f"s_and_b32 s{sVo}, s{sB}, 1")
            a(f"s_lshl_b32 s{sVo}, s{sVo}, 12")
            a(f"s_or_b32 s{sKo}, s{sKo}, s{sVo}")
        a(f"s_mov_b32 s{sVo}, s{sKo}")
    ks_ = o.get("kvstr", 0)
    if ks_:
        a(f"s_mul_i32 s{sStr}, s2, {o.get('kvmul', 0x85EBCA6B)}")
        a(f"s_lshr_b32 s{sStr}, s{sStr}, {ks_}")
        a(f"s_lshl_b32 s{sStr}, s{sStr}, 13")
        a(f"s_or_b32 s{sStr}, s{sStr}, 4096")
    else:
        a(f"s_mov_b32 s{sStr}, 4096")
    for d, sz in ((sX, 983040), (sW, 5242880), (sK, 0x2000000), (sV, 0x2000000)):
        a(f"s_mov_b32 s{d+2}, {sz}"); a(f"s_mov_b32 s{d+3}, 0x20000")
    if o.get("trace", 0):
        for r in range(30, 36): a(f"v_mov_b32 v{r}, 0")
    a("s_waitcnt lgkmcnt(0)")
    st.stamp(a, 0)
    for d, lo in ((sX, sLD), (sW, sLD + 6), (sK, sLD + 2), (sV, sLD + 4)):
        a(f"s_mov_b32 s{d}, s{lo}"); a(f"s_and_b32 s{d+1}, s{lo+1}, 0xffff")
    ed = o.get("ed", "E")
    if ed == "ED":
        a(f"s_bitcmp1_b32 s{sB}, 0")
        a("s_cbranch_scc1 L_schedD")
    a.label("L_schedE")
    emit_loader_schedule(a, P, "E", st, o)
    if ed == "ED":
        a("s_branch L_loader_end")
        a.label("L_schedD")
        emit_loader_schedule(a, P, "D", st, o)
        a.label("L_loader_end")
    if o.get("trace", 0):
        a(f"s_lshl_b32 s{sT0}, s2, 11")
        a(f"s_add_u32 s{sT0}, s{sT0}, {STAMP + 0x100000}")
        a("v_lshlrev_b32 v29, 2, v0")
        for i, r in enumerate((30, 33, 31, 34, 32, 35)):
            a(f"buffer_store_dword v{r}, v29, s[{sWS}:{sWS+3}], s{sT0} offen offset:{256*i}")
        a("s_nop 1")
    st.flush(a, [0, 1, 2], base=11)
    a("s_endpgm")
    nod = o.get("nodma", "")
    if o.get("pat"):
      for nm, srdn, vb, nv, sg, pat, sx in (("K", sK, vK, 4, sKg, o["pat"][0], sKo), ("V", sV, vV, 1, sVg, o["pat"][1], sVo)):
        a.label(f"L_iss{nm}")
        a(f"s_mov_b32 s{sT1}, m0")
        for g in range(4):
            a(f"s_xor_b32 s{sT0}, s{sx}, {pat[g]*4096}")
            a(f"s_add_u32 m0, s{sT1}, s{sT0}")
            a(f"s_add_u32 s{sT0}, s{sg}, s{sT0}")
            for p in range(4):
                if nm not in nod: a(f"buffer_load_dwordx4 v{vb + (p if nv == 4 else 0)}, s[{srdn}:{srdn+3}], s{sT0} offen offset:{p*1024}{o.get('kvpol', ' nt')} lds")
        a(f"s_add_u32 s{sg}, s{sg}, 16384")
        a(f"s_setpc_b64 s[{sRET}:{sRET+1}]")
    else:
      for nm, srdn, vb, nv, sg, so in (("K", sK, vK, 4, sKg, sKo), ("V", sV, vV, 1, sVg, sVo)):
        a.label(f"L_iss{nm}")
        for g in range(4):
            if g: a("s_add_u32 m0, m0, 4096")
            a(f"s_add_u32 s{sT0}, s{sg}, s{so}")
            for p in range(4):
                if nm not in nod: a(f"buffer_load_dwordx4 v{vb + (p if nv == 4 else 0)}, s[{srdn}:{srdn+3}], s{sT0} offen offset:{p*1024}{o.get('kvpol', ' nt')} lds")
                if p == 0: a(f"s_add_u32 s{so}, s{so}, s{sStr}")
                if p == 1: a(f"s_and_b32 s{so}, s{so}, 0x1ffff")
        a(f"s_setpc_b64 s[{sRET}:{sRET+1}]")
    a.label("L_late_setup")
    srd(a, sWS, sWS, sWS + 1, 0x10000000)
    srd(a, sWO, sWO, sWO + 1, 5242880)
    srd(a, sDBG, sDBG, sDBG + 1, 256)
    for p in range(5):
        a(f"v_add_u32 v1, {64*p}, v0")
        a("v_mul_u32_u24 v2, 3277, v1")
        a("v_lshrrev_b32 v2, 16, v2")
        a("v_mul_u32_u24 v3, 20, v2")
        a("v_sub_u32 v3, v1, v3")
        a("v_mul_u32_u24 v2, 1280, v2")
        a("v_lshl_add_u32 v2, v3, 4, v2")
        a(f"v_subrev_u32 v{vO+p}, {(p*1024) if p < 4 else 0}, v2")
    a("v_mov_b32 v26, 0")
    a(f"s_getpc_b64 s[{sPC}:{sPC+1}]")
    a("L_pc2:")
    a(f"s_add_u32 s{sPC}, s{sPC}, L_awave-L_pc2")
    a(f"s_addc_u32 s{sPC+1}, s{sPC+1}, 0")
    a(f"s_mov_b32 s{sEX}, L_exit-L_awave")
    a("v_lshlrev_b32 v23, 7, v0")
    a(f"s_mov_b32 s{sCNT}, 1")
    a(f"s_mul_i32 s{sObase}, s{sJ}, {1024*1280}")
    a(f"s_lshr_b32 s{sT3}, s2, 3")
    if o.get("dtouch"): a(f"s_and_b32 s{sT3}, s{sT3}, 30")
    a(f"s_mul_i32 s{sT3}, s{sT3}, 40960")
    a(f"s_add_u32 s{sT3}, s{sT3}, s{sObase}")
    a(f"s_mul_i32 s{sT0}, s{sHH}, 320")
    a(f"s_add_u32 s{sObase}, s{sObase}, s{sT0}")
    a(f"s_mul_i32 s{sT0}, s{sHH}, {256*1280}")
    a(f"s_add_u32 s{sOg}, s{sObase}, s{sT0}")
    a(f"s_lshl_b32 s{sT0}, s{sCL}, 2")
    a(f"s_add_u32 s{sF1}, s{sT0}, s{sJ}")
    a(f"s_lshl_b32 s{sF1}, s{sF1}, 7")
    a(f"s_add_u32 s{sF1}, s{sF1}, {WS_F1}")
    a(f"s_add_u32 s{sF2}, s{sT0}, s{sHH}")
    a(f"s_lshl_b32 s{sF2}, s{sF2}, 7")
    a(f"s_add_u32 s{sF2}, s{sF2}, {WS_F2}")
    a("v_min_u32 v27, 11, v0")
    a("v_lshlrev_b32 v27, 2, v27")
    a(f"s_lshl_b32 s{sCL}, s{sCL}, 4")
    a("v_lshrrev_b32 v2, 3, v0")
    a("v_lshlrev_b32 v2, 13, v2")
    a("v_bfe_u32 v1, v0, 1, 2")
    a("v_lshl_add_u32 v2, v1, 9, v2")
    a("v_and_b32 v1, 1, v0")
    a("v_lshl_add_u32 v2, v1, 7, v2")
    a(f"s_lshr_b32 s{sT2}, s2, 3")
    if o.get("dtouch"): a(f"s_and_b32 s{sT2}, s{sT2}, 30")
    a(f"s_mul_i32 s{sT2}, s{sT2}, {20*8192}")
    a(f"s_lshl_b32 s{sT0}, s{sJ}, 11")
    a(f"s_add_u32 s{sT2}, s{sT2}, s{sT0}")
    a(f"s_add_u32 s{sT2}, s{sT2}, 256")
    a(f"s_setpc_b64 s[{sRET}:{sRET+1}]")
    a.label("L_issW"); body_W(a, o); a(f"s_setpc_b64 s[{sRET}:{sRET+1}]")
    for h in range(2):
        a.label(f"L_issX{h}"); body_X(a, o, h); a(f"s_setpc_b64 s[{sRET}:{sRET+1}]")
    a.label("L_issO")
    pol = o.get("wopol", "")
    for ks in range(2):
        so = sOg
        if ks:
            a("s_add_u32 m0, m0, 1024"); a(f"s_add_u32 s{sT0}, s{sOg}, {16*1280}"); so = sT0
        for p in range(4):
            if "O" not in nod: a(f"buffer_load_dwordx4 v{vO+p}, s[{sWO}:{sWO+3}], s{so} offen offset:{p*1024}{pol} lds")
        a("s_add_u32 m0, m0, 4096")
        a("s_nop 0")
        if "O" not in nod: a(f"buffer_load_dwordx4 v{vO+4}, s[{sWO}:{sWO+3}], s{so} offen{pol} lds")
    a(f"s_add_u32 s{sOg}, s{sOg}, {32*1280}")
    a(f"s_setpc_b64 s[{sRET}:{sRET+1}]")
    a.label("L_spinG")
    a(f"s_mov_b32 s{sT0}, 0")
    a.label("L_spinlG")
    a(f"buffer_load_dwordx4 v[36:39], v26, s[{sDBG}:{sDBG+3}], s{sCL} offen sc1")
    a(f"s_add_u32 s{sT0}, s{sT0}, 1")
    a(f"s_cmp_ge_u32 s{sT0}, {SPIN}")
    a("s_cbranch_scc1 L_spindG")
    a("s_waitcnt vmcnt(0)")
    a(f"v_cmp_ne_u32 vcc, s{sCNT}, v36")
    a("s_cbranch_vccnz L_spinlG")
    a.label("L_spindG")
    a("s_waitcnt vmcnt(0)")
    a("v_readfirstlane_b32 s73, v37")
    a("v_readfirstlane_b32 s74, v38")
    a("s_nop 1")
    a(f"s_setpc_b64 s[{sRET}:{sRET+1}]")
    a.label("L_chkF")
    a("s_mov_b32 s77, 0")
    a.label("L_chklF")
    a("s_waitcnt lgkmcnt(0)")
    for r in (73, 74, 75, 88, 89, 90, 91, 92, 93, 94, 95): a(f"s_min_u32 s72, s72, s{r}")
    a("s_cmp_ge_u32 s72, s76")
    a("s_cbranch_scc1 L_retF")
    a("s_add_u32 s77, s77, 1")
    a(f"s_cmp_ge_u32 s77, {o.get('nscal', 64)}")
    a("s_cbranch_scc1 L_spinF")
    a(f"s_add_u32 s{sT0}, s{sT1}, 32")
    a(f"s_load_dwordx8 s[88:95], s[{sWS}:{sWS+1}], s{sT1} glc")
    a(f"s_load_dwordx4 s[72:75], s[{sWS}:{sWS+1}], s{sT0} glc")
    a("s_branch L_chklF")
    a.label("L_spinF")
    a(f"s_mov_b32 s{sT0}, 0")
    a.label("L_spinlF")
    a(f"buffer_load_dword v25, v27, s[{sWS}:{sWS+3}], s{sT1} offen sc1")
    a(f"s_add_u32 s{sT0}, s{sT0}, 1")
    a(f"s_cmp_ge_u32 s{sT0}, {SPIN}")
    a("s_cbranch_scc1 L_spindF")
    a("s_waitcnt vmcnt(0)")
    a("v_cmp_gt_u32 vcc, s76, v25")
    a("s_cbranch_vccnz L_spinlF")
    a.label("L_spindF")
    a("s_waitcnt vmcnt(0)")
    a.label("L_retF")
    a(f"s_setpc_b64 s[{sRET}:{sRET+1}]")
    a.label("L_awave")
    a("v_and_b32 v0, 63, v0")
    a(f"v_mov_b32 v{vZ}, 0")
    a(f"s_lshl_b32 s{sT0}, s{sCL}, 2")
    a(f"s_add_u32 s{sF1}, s{sT0}, s{sJ}")
    a(f"s_lshl_b32 s{sF1}, s{sF1}, 7")
    a(f"s_add_u32 s{sF2}, s{sT0}, s{sHH}")
    a(f"s_lshl_b32 s{sF2}, s{sF2}, 7")
    a(f"s_lshl_b32 s{sT0}, s{sWAVE}, 4")
    a(f"s_lshl_b32 s{sT3}, s{sHH}, 2")
    a(f"s_add_u32 s{sT3}, s{sT3}, s{sT0}")
    a(f"s_add_u32 s{sF1}, s{sF1}, s{sT3}")
    a(f"s_add_u32 s{sF1}, s{sF1}, {WS_F1}")
    a(f"s_lshl_b32 s{sT3}, s{sJ}, 2")
    a(f"s_add_u32 s{sT3}, s{sT3}, s{sT0}")
    a(f"s_add_u32 s{sF2}, s{sF2}, s{sT3}")
    a(f"s_add_u32 s{sF2}, s{sF2}, {WS_F2}")
    a("s_waitcnt lgkmcnt(0)")
    srd(a, sWS, sWS, sWS + 1, 0x10000000)
    srd(a, sOUT, sOUT, sOUT + 1, 8 * 96 * 1280 * 2)
    srd(a, sDBG, sDBG, sDBG + 1, 256)
    a(f"s_or_b32 s{sLEAD}, s{sJ}, s{sHH}")
    a(f"s_or_b32 s{sLEAD}, s{sLEAD}, s{sWAVE}")
    a(f"s_cmp_lg_u32 s{sLEAD}, 0")
    a("s_cbranch_scc1 L_noclr")
    a("s_memrealtime s[60:61]")
    a("v_lshlrev_b32 v64, 3, v0")
    a("v_mov_b32 v66, 0")
    a("v_mov_b32 v67, 0")
    a(f"buffer_store_dwordx2 v[66:67], v64, s[{sWS}:{sWS+3}], s{sF1} offen sc1")
    a.label("L_noclr")
    a(f"s_lshl_b32 s{sT0}, s{sBLK}, 8")
    a(f"s_add_u32 s{sT0}, s{sT0}, s{sT2}")
    a(f"s_mul_i32 s{sOoff}, s{sT0}, 24576")
    a(f"s_lshl_b32 s{sT0}, s{sWAVE}, 11")
    a(f"s_add_u32 s{sOoff}, s{sOoff}, s{sT0}")
    a(f"s_mul_i32 s{sT0}, s{sHH}, 49152")
    a(f"s_sub_u32 s{sO0}, s{sOoff}, s{sT0}")
    a(f"s_lshl_b32 s{sT0}, s{sCL}, 2")
    a(f"s_add_u32 s{sT0}, s{sT0}, s{sHH}")
    a(f"s_mul_i32 s{sPr}, s{sT0}, {4*30720}")
    a(f"s_mul_i32 s{sT0}, s{sWAVE}, 10240")
    a(f"s_add_u32 s{sPr}, s{sPr}, s{sT0}")
    a(f"s_add_u32 s{sPr}, s{sPr}, {WS_P}")
    a(f"s_mul_i32 s{sT0}, s{sJ}, 30720")
    a(f"s_add_u32 s{sPoff}, s{sPr}, s{sT0}")
    a(f"s_lshl_b32 s{sT0}, s{sJ}, 7")
    a(f"s_add_u32 s{sPr}, s{sPr}, s{sT0}")
    a(f"s_mul_i32 s{sOutB}, s{sB}, 96")
    a(f"s_lshl_b32 s{sT0}, s{sWAVE}, 5")
    a(f"s_add_u32 s{sOutB}, s{sOutB}, s{sT0}")
    a(f"s_lshl_b32 s{sT0}, s{sJ}, 3")
    a(f"s_add_u32 s{sOutB}, s{sOutB}, s{sT0}")
    a(f"s_mul_i32 s{sOutB}, s{sOutB}, 2560")
    a(f"s_mul_i32 s{sT0}, s{sBLK}, 1280")
    a(f"s_add_u32 s{sOutB}, s{sOutB}, s{sT0}")
    a(f"s_mul_i32 s{sT0}, s{sHH}, 320")
    a(f"s_add_u32 s{sOutB}, s{sOutB}, s{sT0}")
    a(f"s_mov_b32 s{sM16}, 0xffff0000")
    a(f"s_mov_b32 s{sTH}, {THRESH}")
    a(f"s_mov_b32 s{sQS}, {QSCALE}")
    a(f"s_mov_b32 s{sQS+1}, {QSCALE}")
    a(f"v_mov_b32 v{vL0}, 0")
    a(f"v_mov_b32 v{vL1}, 0")
    a(f"v_lshlrev_b32 v{vL16}, 4, v0")
    a("v_and_b32 v64, 31, v0")
    a("v_lshrrev_b32 v65, 5, v0")
    a("v_and_b32 v66, 15, v64")
    a("v_xor_b32 v66, v66, v65")
    a("v_lshlrev_b32 v66, 4, v66")
    a("v_lshl_add_u32 v66, v64, 8, v66")
    a(f"v_add_u32 v66, {KB}, v66")
    for ks in range(8): a(f"v_xor_b32 v{aK+ks}, {ks*32}, v66")
    a("v_bfe_u32 v66, v64, 1, 3")
    a("v_xor_b32 v66, v66, v65")
    a("v_lshlrev_b32 v66, 4, v66")
    a("v_lshl_add_u32 v66, v64, 7, v66")
    a(f"s_lshl_b32 s{sT0}, s{sWAVE}, 12")
    a(f"s_add_u32 s{sT0}, s{sT0}, {XB}")
    a(f"v_add_u32 v66, s{sT0}, v66")
    for ks in range(4): a(f"v_xor_b32 v{aX+ks}, {ks*32}, v66")
    a("v_bfe_u32 v67, v0, 2, 2")
    a("v_and_b32 v68, 1, v0")
    a("v_lshlrev_b32 v68, 4, v68")
    a("v_bfe_u32 v69, v0, 1, 1")
    a("v_lshl_add_u32 v68, v69, 3, v68")
    a("v_bfe_u32 v69, v0, 4, 1")
    a("v_lshl_add_u32 v68, v69, 5, v68")
    a("v_lshl_add_u32 v69, v65, 2, v67")
    a("v_lshl_add_u32 v69, v69, 8, v68")
    a("v_lshl_add_u32 v69, v67, 6, v69")
    a(f"v_add_u32 v69, {VB}, v69")
    for dt in range(4): a(f"v_xor_b32 v{aV+dt}, {dt*64}, v69")
    a("v_lshl_add_u32 v70, v65, 3, v67")
    a("v_lshl_add_u32 v69, v70, 8, v68")
    a("v_lshl_add_u32 v69, v67, 6, v69")
    for dt in range(4): a(f"v_xor_b32 v{aW+dt}, {dt*64}, v69")
    a("v_mul_u32_u24 v70, 320, v70")
    a(f"v_add_u32 v{aO}, v70, v68")
    for c in range(20):
        if c == 19: a("s_waitcnt vmcnt(0)")
        a("s_barrier")
        if c == 0:
            pad(a, o, 0)
            for r in q_reads(0, 0): a(r)
        else:
            emit_tick(a, q_mfmas(c - 1, (c - 1) & 1), spread(q_reads(c, c & 1), 6))
        a("s_waitcnt lgkmcnt(0)")
    gen_middle(a, P, o, st)
    gen_tail(a, P, o, st)
    pad(a, o, 10)
    if st.on:
        a("s_waitcnt vmcnt(0)")
        st.stamp(a, 10)
        a(f"s_cmp_lg_u32 s{sWAVE}, 0")
        a("s_cbranch_scc1 L_exit")
        st.flush(a, range(11))
    a("s_endpgm")
    a.label("L_spinA")
    a(f"s_mov_b32 s{sCNT}, 0")
    a.label("L_spinlA")
    a(f"buffer_load_dword v{vT+1}, v{vPO}, s[{sWS}:{sWS+3}], s{sT1} offen sc1")
    a(f"s_add_u32 s{sCNT}, s{sCNT}, 1")
    a(f"s_cmp_ge_u32 s{sCNT}, {SPIN}")
    a("s_cbranch_scc1 L_spindA")
    a("s_waitcnt vmcnt(0)")
    a(f"v_cmp_gt_u32 vcc, s{sT2}, v{vT+1}")
    a("s_cbranch_vccnz L_spinlA")
    a.label("L_spindA")
    a("s_waitcnt vmcnt(0)")
    a(f"s_setpc_b64 s[{sRET}:{sRET+1}]")
    rare(a, 0)
    rare(a, 1)
    rescaleO(a)
    a.label("L_exit")
    a("s_endpgm")
    return P

def generate(fname, **o):
    a = Asm()
    a(HEADER_COMMENT.rstrip("\n"))
    a(f"; @launch grid=(256,1,1) block=(256,1,1) lds={LDSSZ}")
    a('.amdgcn_target "amdgcn-amd-amdhsa--gfx950"')
    P = gen_kernel(a, o)
    kernel_desc(a, NAME + "_kernel", 512, 102, 256)
    t = a.text()
    n = hazard.check(t)
    assert n == 0, f"{n} hazards"
    i0, i1 = t.index("L_schedE:"), t.index("L_awave:")
    nb_l = t[i0:i1].count("s_barrier"); nb_a = t[i1:].count("s_barrier")
    assert nb_a == P.NT and nb_l == P.NT * (2 if o.get("ed", "E") == "ED" else 1), (nb_a, nb_l, P.NT)
    open(fname, "w").write(t)
    return P

if __name__ == "__main__":
    P = generate("v7.s")
    generate("v7_st.s", stamps=1, trace=2)
    s, n = P.schedule("E")
    for t, x in enumerate(s): print(t, x)
    print(P.oslot, P.NT)
```

```python
import gen7 as G, sys
base = dict(stamps=1, trace=0)
c0 = dict(tlate=17, v15gap=1, nct=4, trates={0:1}, lrate=4, kl1=1, lrate2=4, touch=[21,21,22,22,24], nP1=30, nC1=31, kf2=5, kp2=9, kc2=11)
d = dict(det=(5, 9))
cfg = {
 "a": dict(kvrot=0, **c0),
 "b": dict(pat=([1,2,3,0],[1,2,3,0]), **d, **c0),
 "c": dict(pat=([2,3,0,1],[0,1,2,3]), **d, **c0),
 "d": dict(pat=([2,3,0,1],[0,2,3,1]), **d, **c0),
 "e": dict(pat=([2,3,0,1],[2,3,0,1]), **d, **c0),
 "f": dict(pat=([0,1,2,3],[0,1,2,3]), **d, **c0),
 "g": dict(pat=([3,0,1,2],[3,0,1,2]), **d, **c0),
 "h": dict(pat=([2,0,3,1],[0,2,3,1]), **d, **c0),
}
for k, c in cfg.items():
    P = G.generate(f"v7{k}_st.s", **base, **c)
    G.generate(f"v7{k}.s", **c)
print(" ".join(f"v7{k}_st.s" for k in cfg))
```
